```python
import torch

def _softmax(x, axis=-1):
    return torch.softmax(x, dim=axis)
def _gelu(x):
    return torch.nn.functional.gelu(x, approximate="tanh")
def _silu(x):
    return torch.nn.functional.silu(x)
def _sigmoid(x):
    return torch.sigmoid(x)
def _layernorm(x, axis=-1, eps=1e-5):
    m = x.mean(dim=axis, keepdim=True)
    v = x.var(dim=axis, keepdim=True, unbiased=False)
    return (x - m) / torch.sqrt(v + eps)
def _scatter_add(tgt, idx, src, axis=0):
    return tgt.clone().index_add_(axis, idx, src)
def _segment_sum(src, seg, n):
    out = torch.zeros((n,) + src.shape[1:], dtype=src.dtype)
    return out.index_add_(0, seg, src)
def _pad(x, pw):
    flat = tuple(v for pair in reversed(pw) for v in pair)
    return torch.nn.functional.pad(x, flat)

kernel_name = 'interleave_layers__softmax_full_mha__glu_gated_glu__prompt'

def setup_inputs():

    _w = (lambda a: (lambda t: t.to(torch.bfloat16) if t.is_floating_point() else t)(torch.as_tensor(a)))
    def _A_setup():
        B, S, D = 1, 2048, 448
        return {
            "x": _w((lambda *s: torch.randn(*s, dtype=torch.bfloat16) * 0.05)(B, S, D)),
            "wqkv": _w((lambda *s: torch.randn(*s, dtype=torch.bfloat16) * 0.05)(D, 3 * D)),
            "wo": _w((lambda *s: torch.randn(*s, dtype=torch.bfloat16) * 0.05)(D, D)),
        }
    _A_in = _A_setup()

    def _B_setup():
        B, S, D, F = 1, 2048, 448, 1792
        return {
            "x": _w((lambda *s: torch.randn(*s, dtype=torch.bfloat16) * 0.05)(B, S, D)),
            "w_gate": _w((lambda *s: torch.randn(*s, dtype=torch.bfloat16) * 0.05)(D, F)),
            "w_up": _w((lambda *s: torch.randn(*s, dtype=torch.bfloat16) * 0.05)(D, F)),
            "w_down": _w((lambda *s: torch.randn(*s, dtype=torch.bfloat16) * 0.05)(F, D)),
        }
    _B_in = _B_setup()

    return {
        "A_x": _A_in["x"],
        "A_wqkv": _A_in["wqkv"],
        "A_wo": _A_in["wo"],
        "B_x": _B_in["x"],
        "B_w_gate": _B_in["w_gate"],
        "B_w_up": _B_in["w_up"],
        "B_w_down": _B_in["w_down"],
    }

def reference(A_x, A_wqkv, A_wo, B_x, B_w_gate, B_w_up, B_w_down):
    def _A_ref(x, wqkv, wo):
        B, S, D = x.shape
        H = 16; Dh = D // H
        qkv = (lambda x, *d: x.permute(*d))((x @ wqkv).reshape(B, S, 3, H, Dh), 2, 0, 3, 1, 4)
        q, k, v = qkv[0], qkv[1], qkv[2]
        scale = Dh ** -0.5
        scores = torch.einsum("bhqd,bhkd->bhqk", q, k) * scale
        p = _softmax(scores, axis=-1)
        o = torch.einsum("bhqk,bhkd->bhqd", p, v)
        return (lambda x, *d: x.permute(*d))(o, 0, 2, 1, 3).reshape(B, S, D) @ wo

    def _B_ref(x, w_gate, w_up, w_down):
        g = torch.einsum("bsd,df->bsf", x, w_gate)
        u = torch.einsum("bsd,df->bsf", x, w_up)
        h = _sigmoid(g) * u
        return torch.einsum("bsf,fd->bsd", h, w_down)

    x = A_x
    x = x + _A_ref(_layernorm(x, axis=-1), A_wqkv, A_wo)
    x = x + _B_ref(_layernorm(x, axis=-1), B_w_gate, B_w_up, B_w_down)
    x = x + _A_ref(_layernorm(x, axis=-1), A_wqkv, A_wo)
    x = x + _B_ref(_layernorm(x, axis=-1), B_w_gate, B_w_up, B_w_down)
    return x
```

```python
XA=0x0000000; XB=0x0200000; WQ=0x0400000; WO=0x0600000; WG=0x0700000; WD=0x0B00000
QF=0x0D00000; KV=0x0F00000; OF=0x1300000; HF=0x1500000
CSQ=0x1C00000; CSG=0x1C10000; STA=0x1C20000; STB=0x1C60000; WSEND=0x1D00000
ONES=0x3F803F80
class K:
    def __init__(s,name,nwg,block,lds,vgpr=256,sgpr=96):
        s.name=name; s.nwg=nwg; s.block=block; s.lds=lds; s.vgpr=vgpr; s.sgpr=sgpr
        s.L=[]; s.vm=[]; s.lg=[]
        s(f'.globl {name}\n.p2align 8\n.type {name},@function\n{name}:')
    def __call__(s,t): s.L.append(t)
    def vmop(s,t,tag): s(t); s.vm.append(tag)
    def wvm(s,tag):
        idx=[i for i,x in enumerate(s.vm) if x==tag]
        if not idx: return
        n=len(s.vm)-1-idx[-1]
        assert n<=63,(s.name,tag,n)
        s(f's_waitcnt vmcnt({n})'); s.vm=s.vm[idx[-1]+1:]
    def wvm0(s): s('s_waitcnt vmcnt(0)'); s.vm=[]
    def lgop(s,t,tag): s(t); s.lg.append(tag)
    def wlg(s,tag):
        idx=[i for i,x in enumerate(s.lg) if x==tag]
        if not idx: return
        n=len(s.lg)-1-idx[-1]
        assert n<=15,(s.name,tag,n)
        s(f's_waitcnt lgkmcnt({n})'); s.lg=s.lg[idx[-1]+1:]
    def wlg0(s): s('s_waitcnt lgkmcnt(0)'); s.lg=[]
    def nop(s,n):
        while n>0:
            m=min(n,16); s(f's_nop {m-1}'); n-=m
    def mfma(s,d,a,b,c=None):
        s(f'v_mfma_f32_32x32x16_bf16 v[{d}:{d+15}], v[{a}:{a+3}], v[{b}:{b+3}], '+(f'v[{d}:{d+15}]' if c is None else c))
    def srd(s,d,b,n):
        s(f's_mov_b32 s{d}, s{b}\ns_mov_b32 s{d+1}, s{b+1}\ns_mov_b32 s{d+2}, {n}\ns_mov_b32 s{d+3}, 0x00020000')
    def ld4(s,v,voff,srd,soff,imm,tag):
        s.vmop(f'buffer_load_dwordx4 v[{v}:{v+3}], v{voff}, s[{srd}:{srd+3}], {soff} offen offset:{imm}',tag)
    def st4(s,v,voff,srd,soff,imm,tag='st'):
        s.vmop(f'buffer_store_dwordx4 v[{v}:{v+3}], v{voff}, s[{srd}:{srd+3}], {soff} offen offset:{imm}',tag)
    def dma(s,voff,srd,soff,imm,tag):
        s.vmop(f'buffer_load_dwordx4 v{voff}, s[{srd}:{srd+3}], {soff} offen offset:{imm} lds',tag)
    def dsr(s,v,addr,off,tag):
        assert 0<=off<65536
        s.lgop(f'ds_read_b128 v[{v}:{v+3}], v{addr} offset:{off}',tag)
    def dsw(s,addr,v,off,tag='w'):
        assert 0<=off<65536
        s.lgop(f'ds_write_b128 v{addr}, v[{v}:{v+3}] offset:{off}',tag)
    def divc(s,q,r,x,c,tmp):
        m=(1<<32)//c+1
        s(f's_mul_hi_u32 s{q}, s{x}, {m}\ns_mul_i32 s{tmp}, s{q}, {c}\ns_sub_u32 s{r}, s{x}, s{tmp}')
    def prologue(s):
        s(f's_cmp_ge_u32 s2, {s.nwg}\ns_cbranch_scc1 {s.name}_end')
        s('s_load_dwordx2 s[4:5], s[0:1], 72')
        s('v_lshrrev_b32 v2, 6, v0\nv_and_b32 v0, 63, v0\nv_lshlrev_b32 v1, 4, v0\nv_readfirstlane_b32 s3, v2')
    def ws_srd(s):
        s('s_waitcnt lgkmcnt(0)'); s.srd(8,4,WSEND)
    def end(s):
        s(f'{s.name}_end:\ns_endpgm')
    def text(s): return '\n'.join(s.L)
    def kd(s):
        return (f'.p2align 6\n.amdhsa_kernel {s.name}\n  .amdhsa_next_free_vgpr {s.vgpr}\n  .amdhsa_next_free_sgpr {s.sgpr}\n'
                f'  .amdhsa_accum_offset {s.vgpr}\n  .amdhsa_group_segment_fixed_size 0\n  .amdhsa_kernarg_size 80\n'
                '  .amdhsa_user_sgpr_count 2\n  .amdhsa_user_sgpr_kernarg_segment_ptr 1\n  .amdhsa_system_sgpr_workgroup_id_x 1\n.end_amdhsa_kernel')
    def launch(s): return f'; @launch kernel={s.name} grid=({s.nwg},1,1) block=({s.block},1,1) lds={s.lds}'
    def ld_stats(s,b,vtmp,sbase,tag):
        s(f'v_and_b32 v{vtmp}, 31, v0\nv_mul_u32_u24 v{vtmp}, 112, v{vtmp}\nv_lshrrev_b32 v{vtmp+1}, 5, v0\nv_mul_u32_u24 v{vtmp+1}, 56, v{vtmp+1}\nv_add_u32 v{vtmp}, v{vtmp}, v{vtmp+1}')
        for i in range(3): s.ld4(b+4*i,vtmp,8,sbase,16*i,tag)
        s.vmop(f'buffer_load_dwordx2 v[{b+12}:{b+13}], v{vtmp}, s[8:11], {sbase} offen offset:48',tag)
    def fin_stats(s,b,vm,vr):
        for i in range(1,7):
            s(f'v_add_f32 v{b}, v{b}, v{b+2*i}\nv_add_f32 v{b+1}, v{b+1}, v{b+2*i+1}')
        s(f'v_mov_b32 v{b+2}, v{b}\nv_mov_b32 v{b+3}, v{b+1}\ns_nop 1')
        s(f'v_permlane32_swap_b32 v{b}, v{b+2}\nv_permlane32_swap_b32 v{b+1}, v{b+3}\ns_nop 1')
        s(f'v_add_f32 v{b}, v{b}, v{b+2}\nv_add_f32 v{b+1}, v{b+1}, v{b+3}')
        import struct
        inv=struct.unpack('<I',struct.pack('<f',1.0/448))[0]; eps=struct.unpack('<I',struct.pack('<f',1e-5))[0]
        s(f'v_mul_f32 v{vm}, 0x{inv:x}, v{b}\nv_mul_f32 v{b+1}, 0x{inv:x}, v{b+1}')
        s(f'v_fma_f32 v{b+1}, -v{vm}, v{vm}, v{b+1}\nv_max_f32 v{b+1}, 0, v{b+1}\nv_add_f32 v{b+1}, 0x{eps:x}, v{b+1}\nv_rsq_f32 v{vr}, v{b+1}\ns_nop 0')
    def st_stats(s,p,t,sone,voff,soff):
        s(f'v_mov_b32 v{t}, 0\nv_mov_b32 v{t+1}, 0')
        for i in range(8):
            s(f'v_dot2_f32_bf16 v{t}, v{p+i}, s{sone}, v{t}')
            s(f'v_dot2_f32_bf16 v{t+1}, v{p+i}, v{p+i}, v{t+1}')
        s('s_nop 3')
        s(f'v_permlane32_swap_b32 v{t}, v{t+1}\ns_nop 1\nv_add_f32 v{t}, v{t}, v{t+1}')
        s.vmop(f'buffer_store_dword v{t}, v{voff}, s[8:11], {soff} offen','st')
def f2u(x):
    import struct
    return struct.unpack('<I',struct.pack('<f',x))[0]
```

```python
from core import *
import math
X0=16
ACC=128
WB=192
def phase1_issue(k,wrel):
    k('s_mul_i32 s22, s3, 3072\ns_add_u32 s23, s20, s22')
    for c in range(7):
        k(f's_add_u32 s24, s22, {c*12288}\ns_mov_b32 m0, s24\ns_add_u32 s25, s23, {c*12288}\ns_add_u32 s26, s21, {c*4096}')
        for i in range(3): k.dma(1,8,'s25',1024*i,f'c{c}')
        for i in range(4): k.ld4(X0+16*c+4*i,1,8,'s26',1024*i,f'c{c}')
def lds_rd(k,v,off,tag):
    k.dsr(v,1+off//65536,off%65536,tag)
def phase1_compute(k,swapv):
    for c in range(7):
        k.wvm(f'c{c}'); k('s_barrier')
        def rd(q):
            for p in range(3): lds_rd(k,WB+12*(q&1)+4*p,((4*c+q)*3+p)*1024,f'r{q}')
        rd(0); rd(1)
        for q in range(4):
            k.wlg(f'r{q}')
            ks=4*c+q
            for p in range(3):
                w=WB+12*(q&1)+4*p; x=X0+4*ks
                a,b=(x,w) if (swapv and p==2) else (w,x)
                k.mfma(ACC+16*p,a,b,'0' if ks==0 else None)
            if q+2<4: rd(q+2)
def gen_A(name,xsrc,stsrc):
    k=K(name,256,256,86016+1024)
    k.prologue()
    k('s_and_b32 s12, s2, 3\ns_lshl_b32 s12, s12, 2\ns_bfe_u32 s13, s2, 0x20003\ns_add_u32 s12, s12, s13')
    k('s_bfe_u32 s13, s2, 0x10002\ns_lshl_b32 s13, s13, 3\ns_lshr_b32 s14, s2, 5\ns_add_u32 s13, s13, s14')
    k('s_lshl_b32 s12, s12, 2\ns_add_u32 s12, s12, s3')
    k(f's_mul_i32 s20, s13, 86016\ns_add_u32 s20, s20, {WQ}\ns_mul_i32 s21, s12, 28672\ns_add_u32 s21, s21, {xsrc}')
    k('v_add_u32 v2, 65536, v1')
    k.ws_srd()
    phase1_issue(k,0)
    ST=216; CS=232
    k(f's_mul_i32 s27, s12, 3584\ns_add_u32 s27, s27, {stsrc}')
    k.ld_stats(ST,4,'s27','e')
    k(f's_mul_i32 s28, s13, 384\ns_add_u32 s28, s28, {CSQ}')
    k('v_lshrrev_b32 v6, 5, v0\nv_lshlrev_b32 v6, 6, v6\nv_and_b32 v7, 31, v0\nv_lshlrev_b32 v7, 2, v7')
    for i in range(4): k.ld4(232+4*i,6,8,'s28',16*i,'e')
    for i in range(4): k.ld4(176+4*i,6,8,'s28',128+16*i,'e')
    k.vmop('buffer_load_dword v8, v7, s[8:11], s28 offen offset:256','e')
    phase1_compute(k,True)
    k.wvm('e')
    k.fin_stats(ST,9,10)
    k('v_mul_f32 v11, v9, v10')
    k(f's_lshl_b32 s29, s3, 8\ns_add_u32 s29, s29, 86016\nv_lshrrev_b32 v12, 5, v0\nv_lshl_add_u32 v13, v12, 7, v7\nv_add_u32 v13, s29, v13')
    k('s_mov_b32 s30, 0\ns_mov_b32 s31, -1\nv_cndmask_b32 v14, v10, v11, s[30:31]\nds_write_b32 v13, v14')
    k('v_lshl_add_u32 v12, v12, 4, s29\ns_waitcnt lgkmcnt(0)')
    for g in range(4):
        k(f'ds_read_b128 v[{X0+4*g}:{X0+4*g+3}], v12 offset:{32*g}')
        k(f'ds_read_b128 v[{X0+16+4*g}:{X0+19+4*g}], v12 offset:{128+32*g}')
    c=f2u(28**-0.5*math.log2(math.e))
    k(f'v_mul_f32 v12, 0x{c:x}, v10\nv_mul_f32 v13, 0x{c:x}, v11')
    k(f's_lshl_b32 s14, s13, 6\ns_add_u32 s14, s14, s12\ns_lshl_b32 s15, s14, 11\ns_add_u32 s15, s15, {QF}\ns_lshl_b32 s16, s14, 12\ns_add_u32 s16, s16, {KV}')
    k(f's_mov_b32 s34, 0x{ONES:x}\nv_mov_b32 v15, s34\ns_mov_b32 s32, 0x10000000\ns_mov_b32 s33, 0x10000000')
    PK=64
    for i in range(16):
        k(f'v_mul_f32 v{ACC+i}, v{ACC+i}, v12\nv_fma_f32 v{ACC+i}, -v13, v{232+i}, v{ACC+i}')
    for i in range(8): k(f'v_cvt_pk_bf16_f32 v{PK+i}, v{ACC+2*i}, v{ACC+2*i+1}')
    k.st4(PK,1,8,'s15',0); k.st4(PK+4,1,8,'s15',1024)
    for i in range(16):
        k(f'v_mul_f32 v{ACC+16+i}, v{ACC+16+i}, v10\nv_fma_f32 v{ACC+16+i}, -v11, v{176+i}, v{ACC+16+i}')
    for i in range(8): k(f'v_cvt_pk_bf16_f32 v{PK+8+i}, v{ACC+16+2*i}, v{ACC+17+2*i}')
    k(f'v_cndmask_b32 v{PK+14}, v{PK+14}, v15, s[30:31]')
    k.st4(PK+8,1,8,'s16',0); k.st4(PK+12,1,8,'s16',1024)
    k('s_waitcnt lgkmcnt(0)')
    for i in range(16):
        k(f'v_mul_f32 v{ACC+32+i}, v{ACC+32+i}, v{X0+i}\nv_fma_f32 v{ACC+32+i}, -v{X0+16+i}, v8, v{ACC+32+i}')
    for i in range(8):
        k(f'v_cvt_pk_bf16_f32 v{PK+16+i}, v{ACC+32+2*i}, v{ACC+33+2*i}')
    for i in range(8): k(f'v_cndmask_b32 v{PK+16+i}, v{PK+16+i}, v15, s[32:33]')
    k.st4(PK+16,1,8,'s16',2048); k.st4(PK+20,1,8,'s16',3072)
    k.end(); return k

def glu_ops(k,acc,cs,tmp,tile):
    ops=[]
    for g in range(4): ops.append(('dsr',cs+4*g,tile*128+16*g))
    ops.append(('wcs',))
    for half in range(2):
        I=range(4*half,4*half+4)
        for i in I: ops.append(f'v_mul_f32 v{tmp+i}, v12, v{cs+i}')
        for i in I: ops.append(f'v_fma_f32 v{tmp+i}, v{acc+i}, v11, -v{tmp+i}')
        for i in I: ops.append(f'v_exp_f32 v{tmp+i}, v{tmp+i}')
        for i in I: ops.append(f'v_mul_f32 v{acc+8+i}, v{acc+8+i}, v9')
        for i in I: ops.append(f'v_add_f32 v{tmp+i}, 1.0, v{tmp+i}')
        for i in I: ops.append(f'v_rcp_f32 v{tmp+i}, v{tmp+i}')
        for i in I: ops.append(f'v_fma_f32 v{acc+8+i}, -v10, v{cs+8+i}, v{acc+8+i}')
        for i in I: ops.append(f'v_mul_f32 v{tmp+i}, v{tmp+i}, v{acc+8+i}')
    for i in range(4): ops.append(f'v_cvt_pk_bf16_f32 v{tmp+8+i}, v{tmp+2*i}, v{tmp+2*i+1}')
    ops.append(('st',tmp+8,tile))
    return ops
def emit_op(k,o):
    if isinstance(o,str): k(o)
    elif o[0]=='dsr': k.dsr(o[1],13,o[2],'cs')
    elif o[0]=='wcs': k.wlg('cs')
    elif o[0]=='st':
        t=o[2]; k.st4(o[1],1,8,'s28' if t<4 else 's29',1024*(t&3))
def gen_D(name):
    CSL=143360
    k=K(name,256,256,CSL+1024)
    k.prologue()
    k('s_and_b32 s12, s2, 1\ns_lshl_b32 s12, s12, 3\ns_bfe_u32 s13, s2, 0x30003\ns_add_u32 s12, s12, s13')
    k('s_bfe_u32 s13, s2, 0x20001\ns_lshl_b32 s13, s13, 2\ns_lshr_b32 s14, s2, 6\ns_add_u32 s13, s13, s14')
    k('s_lshl_b32 s12, s12, 2\ns_add_u32 s12, s12, s3')
    k(f's_mul_i32 s20, s13, 200704\ns_add_u32 s20, s20, {WG}\ns_mul_i32 s21, s12, 28672\ns_add_u32 s21, s21, {XB}')
    k('v_add_u32 v2, 65536, v1\nv_add_u32 v3, 65536, v2')
    k.ws_srd()
    phase1_issue(k,0)
    ST=216
    k(f's_mul_i32 s27, s12, 3584\ns_add_u32 s27, s27, {STB}')
    k.ld_stats(ST,4,'s27','e')
    k(f's_mul_i32 s27, s13, 896\ns_add_u32 s27, s27, {CSG}\ns_mov_b32 m0, {CSL}\ns_nop 0')
    k.dma(1,8,'s27',0,'e')
    slot={3:86016,4:114688,5:0,6:28672}
    def tile_dma(t):
        k(f's_mul_i32 s22, s3, 7168\ns_add_u32 s23, s22, s20\ns_add_u32 s23, s23, {t*28672}\ns_add_u32 s22, s22, {slot[t]}\ns_mov_b32 m0, s22\ns_nop 0')
        for i in range(4): k.dma(1,8,'s23',1024*i,f't{t}')
        k('s_add_u32 s22, s22, 4096\ns_add_u32 s23, s23, 4096\ns_mov_b32 m0, s22\ns_nop 0')
        for i in range(3): k.dma(1,8,'s23',1024*i,f't{t}')
    tile_dma(3); tile_dma(4)
    k(f's_mul_i32 s28, s12, 112\ns_mul_i32 s29, s13, 7\ns_add_u32 s28, s28, s29\ns_lshl_b32 s28, s28, 10\ns_add_u32 s28, s28, {HF}\ns_add_u32 s29, s28, 4096')
    k(f'v_lshrrev_b32 v13, 5, v0\nv_lshlrev_b32 v13, 6, v13\nv_add_u32 v13, {CSL}, v13')
    phase1_compute(k,False)
    k.wvm('e')
    k.fin_stats(ST,10,9)
    c=f2u(-math.log2(math.e))
    k(f'v_mul_f32 v10, v10, v9\nv_mul_f32 v11, 0x{c:x}, v9\nv_mul_f32 v12, 0x{c:x}, v10')
    acc={0:ACC,1:ACC+16,2:ACC+32,3:ACC+48,4:ACC,5:ACC+16,6:ACC+32}
    epi={3:[0,1],4:[2,3],5:[4],6:[5]}
    CSR=216; TMP=232
    for t in range(3,7):
        k.wvm(f't{t}'); k('s_barrier')
        if t==3: tile_dma(5); tile_dma(6)
        ops=[]
        for e in epi[t]: ops+=glu_ops(k,acc[e],CSR,TMP,e)
        NB=6
        def rd(q): lds_rd(k,WB+4*(q%NB),slot[t]+q*1024,f'r{q}')
        for q in range(4): rd(q)
        start=2; per=-(-len(ops)//(28-start)); oi=0
        for q in range(28):
            k.wlg(f'r{q}')
            k.mfma(acc[t],WB+4*(q%NB),X0+4*q,'0' if q==0 else None)
            if q+4<28: rd(q+4)
            if q>=start:
                for o in ops[oi:oi+per]: emit_op(k,o)
                oi+=per
        assert oi>=len(ops)
    k.nop(12)
    for o in glu_ops(k,acc[6],CSR,TMP,6): emit_op(k,o)
    k.end(); return k
```

```python
from core import *
def gen_B(name):
    k=K(name,256,512,131072+64)
    n=name
    k.prologue()
    k('s_and_b32 s12, s2, 7\ns_lshl_b32 s12, s12, 1\ns_bfe_u32 s13, s2, 0x10003\ns_add_u32 s12, s12, s13\ns_lshr_b32 s13, s2, 4')
    k(f's_lshl_b32 s14, s12, 6\ns_lshl_b32 s15, s13, 2\ns_add_u32 s15, s15, s14\ns_lshl_b32 s15, s15, 11\ns_add_u32 s15, s15, {QF}\ns_add_u32 s16, s15, 4096')
    k(f's_lshl_b32 s17, s3, 3\ns_add_u32 s17, s17, s14\ns_lshl_b32 s17, s17, 12\ns_add_u32 s17, s17, {KV}')
    k('s_mov_b32 s19, 0')
    k.ws_srd()
    Q=16; O=48; S=112; P=144; R=152; ND=6
    def kvload(t):
        k(f's_add_u32 s18, s17, {4096*t}')
        for i in range(4): k.ld4(R+16*(t%ND)+4*i,1,8,'s18',1024*i,f'k{t}' if i<2 else f'v{t}')
    kvload(0)
    for i in range(8): k.ld4(Q+4*i,1,8,'s15' if i<4 else 's16',1024*(i&3),'k0')
    k(f's_branch {n}_go')
    k(f'{n}_again:')
    sv=k.vm; k.vm=[]
    kvload(0)
    for i in range(8): k(f'buffer_load_dword v3, v1, s[8:11], s15 offen')
    k.vm=sv
    k(f'{n}_go:')
    for t in range(1,ND): kvload(t)
    units=[(t,q) for t in range(8) for q in range(4)]
    def qk(u,h):
        t,q=units[u]
        if h==0 and q==0: k.wvm(f'k{t}')
        k.mfma(S+16*(u&1),R+16*(t%ND)+4*h,Q+8*q+4*h,'0' if h==0 else None)
    def pv(u,h):
        t,q=units[u]
        if h==0 and q==0: k.wvm(f'v{t}')
        k.mfma(O+16*q,R+16*(t%ND)+8+4*h,P+4*h,'0' if (t==0 and h==0) else None)
        if h==1 and q==3 and t+ND<8: kvload(t+ND)
    qk(0,0); qk(0,1); k.nop(11)
    for u in range(32):
        s=S+16*(u&1)
        def eg(g):
            for i in range(4): k(f'v_exp_f32 v{s+4*g+i}, v{s+4*g+i}')
            k(f'v_cvt_pk_bf16_f32 v{P+2*g}, v{s+4*g}, v{s+4*g+1}\nv_cvt_pk_bf16_f32 v{P+2*g+1}, v{s+4*g+2}, v{s+4*g+3}')
        if u+1<32: qk(u+1,0)
        eg(0)
        if u>0: pv(u-1,1)
        eg(1)
        if u+1<32: qk(u+1,1)
        eg(2)
        pv(u,0)
        eg(3)
    k.nop(2); pv(31,1)
    k('s_lshl_b32 s20, s3, 14\nv_add_u32 v2, s20, v1')
    k('s_lshr_b32 s21, s3, 1\ns_and_b32 s22, s3, 1\ns_lshl_b32 s23, s21, 12\ns_lshl_b32 s24, s22, 11\ns_add_u32 s24, s24, s23')
    k('v_add_u32 v4, s24, v1\nv_add_u32 v5, 65536, v4')
    k('v_and_b32 v6, 31, v0\nv_lshlrev_b32 v6, 4, v6\ns_add_u32 s23, s23, 3584\nv_add_u32 v6, s23, v6\nv_add_u32 v7, 65536, v6')
    for i in range(12): k.dsw(2,O+4*i,1024*i)
    for i in range(12,16): k.dsw(2,O+4*i,1024*i)
    k.wlg0(); k('s_barrier')
    A=R
    for w in range(8):
        k(f'ds_read_b32 v{S+w}, v{6+w//4} offset:{(w&3)*16384}')
    for w in range(8):
        for g in range(2): k(f'ds_read_b128 v[{A+8*w+4*g}:{A+8*w+4*g+3}], v{4+w//4} offset:{(w&3)*16384+g*1024}')
        if w==3: k('s_waitcnt lgkmcnt(8)'); [k(f'v_add_f32 v{S}, v{S}, v{S+i}') for i in range(1,8)]
    k(f's_mul_i32 s25, s13, 4\ns_add_u32 s25, s25, s21\ns_lshl_b32 s25, s25, 5\ns_lshl_b32 s26, s12, 1\ns_add_u32 s25, s25, s26\ns_add_u32 s25, s25, s22\ns_lshl_b32 s25, s25, 10\ns_add_u32 s25, s25, {OF}')
    k(f's_cmp_lg_u32 s19, 0\ns_cbranch_scc1 {n}_fin')
    k(f'v_cmp_nge_f32 vcc, 0x5f800000, v{S}\nv_mov_b32 v8, 0x1f800000\nv_cmp_nge_f32 s[28:29], v{S}, v8\ns_nop 1\ns_or_b64 vcc, vcc, s[28:29]')
    k('s_cmp_lg_u64 vcc, 0\ns_cselect_b32 s27, 1, 0\nv_mov_b32 v8, s27\ns_lshl_b32 s28, s3, 2\ns_add_u32 s28, s28, 131072\nv_mov_b32 v9, s28\nv_mov_b32 v10, 131072')
    k('ds_write_b32 v9, v8\ns_waitcnt lgkmcnt(0)\ns_barrier\nds_read_b128 v[112:115], v10\nds_read_b128 v[116:119], v10 offset:16'.replace('v[112:115]',f'v[{S+8}:{S+11}]').replace('v[116:119]',f'v[{S+12}:{S+15}]'))
    k('s_waitcnt lgkmcnt(0)')
    k(f'v_or3_b32 v8, v{S+8}, v{S+9}, v{S+10}\nv_or3_b32 v8, v8, v{S+11}, v{S+12}\nv_or3_b32 v8, v8, v{S+13}, v{S+14}\nv_or_b32 v8, v8, v{S+15}\ns_nop 0\nv_readfirstlane_b32 s27, v8')
    k(f's_cmp_lg_u32 s27, 0\ns_cbranch_scc1 {n}_slow')
    k(f'{n}_fin:')
    k(f's_waitcnt lgkmcnt(0)\nv_rcp_f32 v{S}, v{S}')
    for w in range(1,8):
        for i in range(8): k(f'v_add_f32 v{A+i}, v{A+i}, v{A+8*w+i}')
    for i in range(8): k(f'v_mul_f32 v{A+i}, v{A+i}, v{S}')
    for i in range(4): k(f'v_cvt_pk_bf16_f32 v{P+i}, v{A+2*i}, v{A+2*i+1}')
    k.st4(P,1,8,'s25',0)
    k('s_endpgm')
    k(f'{n}_slow:')
    M=8
    for q in range(4): k(f'v_mov_b32 v{M+q}, 0xff800000')
    k('s_mov_b32 s18, s17\ns_mov_b32 s27, 8')
    k(f'{n}_mx:')
    k(f'buffer_load_dwordx4 v[{R}:{R+3}], v1, s[8:11], s18 offen\nbuffer_load_dwordx4 v[{R+4}:{R+7}], v1, s[8:11], s18 offen offset:1024\ns_waitcnt vmcnt(0)')
    for q in range(4):
        k.mfma(S,R,Q+8*q,'0'); k.mfma(S,R+4,Q+8*q+4); k.nop(13)
        for i in range(8): k(f'v_max3_f32 v{M+q}, v{M+q}, v{S+2*i}, v{S+2*i+1}')
        k.nop(2)
    k(f's_add_u32 s18, s18, 4096\ns_sub_u32 s27, s27, 1\ns_cmp_lg_u32 s27, 0\ns_cbranch_scc1 {n}_mx')
    k('s_lshl_b32 s20, s3, 10\nv_lshl_add_u32 v12, v0, 2, s20\nv_and_b32 v13, 31, v0\nv_lshlrev_b32 v13, 2, v13')
    for q in range(4): k(f'ds_write_b32 v12, v{M+q} offset:{256*q}')
    k('s_waitcnt lgkmcnt(0)\ns_barrier\ns_mov_b32 s28, 0\ns_mov_b32 s29, -1')
    for q in range(4):
        for w in range(8):
            for h in range(2): k(f'ds_read_b32 v{S+2*w+h}, v13 offset:{1024*w+256*q+128*h}')
        k('s_waitcnt lgkmcnt(0)')
        for i in range(8): k(f'v_max3_f32 v{M+q}, v{M+q}, v{S+2*i}, v{S+2*i+1}')
        k(f'v_sub_f32 v{M+q}, 0, v{M+q}\nv_cvt_pk_bf16_f32 v14, v{M+q}, v{M+q}\nv_lshlrev_b32 v14, 16, v14\nv_sub_f32 v15, v{M+q}, v14')
        k(f'v_cvt_pk_bf16_f32 v14, v14, v15\nv_cndmask_b32 v{Q+8*q+6}, v{Q+8*q+6}, v14, s[28:29]')
    k(f's_barrier\ns_mov_b32 s19, 1\ns_branch {n}_again')
    k.end(); return k
```

```python
from core import *
def gen_CE(name,src,wsrc,KS,res,dst,stdst):
    k=K(name,224,256,49152)
    k.prologue()
    if dst is None: k('s_load_dwordx2 s[6:7], s[0:1], 56')
    k('s_and_b32 s12, s2, 7\ns_lshr_b32 s13, s2, 3'); k.divc(14,15,13,7,16)
    k('s_lshl_b32 s12, s12, 2\ns_add_u32 s12, s12, s14')
    k('s_lshr_b32 s16, s3, 1\ns_and_b32 s17, s3, 1')
    k('s_lshl_b32 s12, s12, 1\ns_add_u32 s12, s12, s16\ns_xor_b32 s13, s12, 1')
    k('s_lshl_b32 s15, s15, 1\ns_add_u32 s14, s15, s17\ns_xor_b32 s15, s14, 1')
    per=KS//4
    k(f's_mul_i32 s18, s3, {per*1024}')
    for d,sr,b in ((20,12,src),(21,13,src),(22,14,wsrc),(23,15,wsrc)):
        k(f's_mul_i32 s{d}, s{sr}, {KS*1024}\ns_add_u32 s{d}, s{d}, s18\ns_add_u32 s{d}, s{d}, {b}')
    k.ws_srd()
    if dst is None: k.srd(32,6,2048*896)
    ACC=16; R=80; ND=8; RES=208
    def ld(q):
        if q and q%4==0:
            for d in range(20,24): k(f's_add_u32 s{d}, s{d}, 4096')
        for i in range(4): k.ld4(R+16*(q%ND)+4*i,1,8,f's{20+i}',1024*(q&3),f'k{q}')
    for q in range(ND): ld(q)
    k(f's_mul_i32 s24, s12, 28\ns_lshl_b32 s25, s14, 1\ns_add_u32 s24, s24, s25\ns_lshl_b32 s24, s24, 10\ns_add_u32 s25, s24, {res}')
    k.ld4(RES,1,8,'s25',0,'res'); k.ld4(RES+4,1,8,'s25',1024,'res')
    for q in range(per):
        k.wvm(f'k{q}')
        b=R+16*(q%ND)
        for s in range(4): k.mfma(ACC+16*s,b+8+4*(s&1),b+4*(s>>1),'0' if q==0 else None)
        if q+ND<per: ld(q+ND)
    for s in range(1,4): k(f's_xor_b32 s26, s3, {s}\ns_mul_i32 s26, s26, 12288\ns_add_u32 s26, s26, {(s-1)*4096}\nv_add_u32 v{1+s}, s26, v1')
    k('s_mul_i32 s26, s3, 12288\nv_add_u32 v5, s26, v1')
    for s in range(1,4):
        for g in range(4): k.dsw(1+s,ACC+16*s+4*g,1024*g)
    k.wlg0(); k('s_barrier')
    for j in range(12): k.dsr(R+4*j,5,1024*j,f'r{j//4}')
    k('v_and_b32 v6, 31, v0\nv_lshrrev_b32 v7, 5, v0')
    k.wvm('res')
    for i in range(8):
        k(f'v_lshlrev_b32 v8, 16, v{RES+i}\nv_and_b32 v9, 0xffff0000, v{RES+i}\nv_add_f32 v{ACC+2*i}, v{ACC+2*i}, v8\nv_add_f32 v{ACC+2*i+1}, v{ACC+2*i+1}, v9')
    for j in range(3):
        k.wlg(f'r{j}')
        for i in range(16): k(f'v_add_f32 v{ACC+i}, v{ACC+i}, v{R+16*j+i}')
    for i in range(8): k(f'v_cvt_pk_bf16_f32 v{RES+i}, v{ACC+2*i}, v{ACC+2*i+1}')
    if dst is None:
        k('v_mul_u32_u24 v6, 896, v6\nv_lshl_add_u32 v6, v7, 4, v6\ns_mul_i32 s25, s12, 28672\ns_lshl_b32 s26, s14, 6\ns_add_u32 s25, s25, s26')
        k.st4(RES,6,32,'s25',0); k.st4(RES+4,6,32,'s25',32)
    else:
        k(f's_add_u32 s25, s24, {dst}')
        k.st4(RES,1,8,'s25',0); k.st4(RES+4,1,8,'s25',1024)
        k(f'v_mul_u32_u24 v6, 112, v6\nv_lshl_add_u32 v6, v7, 2, v6\ns_mul_i32 s25, s12, 3584\ns_lshl_b32 s26, s14, 3\ns_add_u32 s25, s25, s26\ns_add_u32 s25, s25, {stdst}\ns_mov_b32 s27, 0x{ONES:x}')
        k.st_stats(RES,10,27,6,'s25')
    k.end(); return k
```

```python
from core import *
def gen_P():
    k=K('prep_kernel',230,256,2048,vgpr=128)
    k.prologue()
    k('s_load_dwordx4 s[12:15], s[0:1], 0\ns_load_dwordx2 s[16:17], s[0:1], 16\ns_load_dwordx4 s[20:23], s[0:1], 32\ns_load_dwordx2 s[24:25], s[0:1], 48')
    k.ws_srd()
    k.srd(28,12,2048*896)
    k(f's_mov_b32 s40, 0x{ONES:x}')
    k('v_and_b32 v2, 31, v0\nv_lshrrev_b32 v3, 5, v0')
    k('v_and_b32 v4, 0x13, v2\nv_and_b32 v5, 4, v2\nv_lshlrev_b32 v5, 1, v5\nv_or_b32 v4, v4, v5\nv_and_b32 v5, 8, v2\nv_lshrrev_b32 v5, 1, v5\nv_or_b32 v4, v4, v5')
    k('s_lshl_b32 s41, s2, 2\ns_add_u32 s41, s41, s3\ns_cmp_ge_u32 s41, 896\ns_cbranch_scc1 prep_noX')
    k.divc(42,43,41,14,44)
    k('v_mul_u32_u24 v6, 896, v2\nv_lshl_add_u32 v6, v3, 4, v6')
    k('s_mul_i32 s44, s42, 28672\ns_lshl_b32 s45, s43, 6\ns_add_u32 s44, s44, s45')
    k.ld4(8,6,28,'s44',0,'x'); k.ld4(12,6,28,'s44',32,'x')
    k('s_mul_i32 s44, s42, 28\ns_lshl_b32 s45, s43, 1\ns_add_u32 s44, s44, s45\ns_lshl_b32 s44, s44, 10')
    k(f's_add_u32 s44, s44, {XA}')
    k(f's_mul_i32 s45, s42, 3584\ns_lshl_b32 s46, s43, 3\ns_add_u32 s45, s45, s46\ns_add_u32 s45, s45, {STA}')
    k('v_mul_u32_u24 v7, 112, v2\nv_lshl_add_u32 v7, v3, 2, v7')
    k.wvm0()
    k.st4(8,1,8,'s44',0); k.st4(12,1,8,'s44',1024)
    k.st_stats(8,16,40,7,'s45')
    k('prep_noX:'); k.vm=[]
    k('s_cmp_lt_u32 s2, 48\ns_cbranch_scc1 prep_qkv\ns_cmp_lt_u32 s2, 160\ns_cbranch_scc1 prep_gu\ns_cmp_lt_u32 s2, 174\ns_cbranch_scc1 prep_wo')
    R=24
    P=88
    def loads(nks,srd,stride,steps,masks=None):
        for q in range(nks):
            for mi,(m,sr) in enumerate(masks or [(None,srd)]):
                if m: k(f's_mov_b32 exec_lo, 0x{m:x}\ns_mov_b32 exec_hi, 0x{m:x}')
                for j in range(8):
                    k(f's_add_u32 s51, s50, {j*stride}')
                    k(f'buffer_load_ushort v{R+8*q+j}, v6, s[{sr}:{sr+3}], s51 offen')
            k(f's_add_u32 s50, s50, {steps[q]*stride}')
        if masks: k('s_mov_b64 exec, -1')
        k('s_waitcnt vmcnt(0)')
        for q in range(nks):
            for j in range(4): k(f'v_lshl_or_b32 v{P+4*q+j}, v{R+8*q+2*j+1}, 16, v{R+8*q+2*j}')
    def stores(nks,step):
        for q in range(nks):
            k(f'buffer_store_dwordx4 v[{P+4*q}:{P+4*q+3}], v1, s[8:11], s52 offen')
            k(f's_add_u32 s52, s52, {step}')
    def colsum(perm):
        k('v_mov_b32 v16, 0')
        for i in range(28): k(f'v_dot2_f32_bf16 v16, v{P+i}, s40, v16')
        k('s_lshl_b32 s54, s3, 8\nv_lshl_add_u32 v17, v0, 2, s54\ns_nop 2\nds_write_b32 v17, v16\ns_waitcnt lgkmcnt(0)\ns_barrier')
        k('v_lshlrev_b32 v17, 2, v2')
        for i in range(8): k(f'ds_read_b32 v{R+i}, v17 offset:{128*i}')
        k('s_waitcnt lgkmcnt(0)')
        for i in range(1,8): k(f'v_add_f32 v{R}, v{R}, v{R+i}')
        k('v_and_b32 v18, 3, v2\nv_lshrrev_b32 v19, 3, v2\nv_lshl_add_u32 v18, v19, 2, v18\nv_bfe_u32 v19, v2, 2, 1\nv_lshl_add_u32 v18, v19, 4, v18')
        k(f'v_cndmask_b32 v18, v2, v18, s[56:57]\nv_lshlrev_b32 v18, 2, v18')
        k(f'buffer_store_dword v{R}, v18, s[8:11], s53 offen')
    k.srd(32,24,1792*896)
    k('s_sub_u32 s41, s2, 174\ns_lshr_b32 s42, s41, 2\ns_and_b32 s43, s41, 3')
    k('s_mul_i32 s44, s43, 28\ns_mul_i32 s45, s3, 7\ns_add_u32 s44, s44, s45')
    k('s_mul_i32 s50, s44, 14336\ns_lshl_b32 s45, s42, 6\ns_add_u32 s50, s50, s45')
    k('v_mul_u32_u24 v6, 7168, v3\nv_lshl_add_u32 v6, v4, 1, v6')
    k(f's_mul_i32 s52, s42, 112\ns_add_u32 s52, s52, s44\ns_lshl_b32 s52, s52, 10\ns_add_u32 s52, s52, {WD}')
    loads(7,32,896,[16]*7); stores(7,1024)
    k('s_endpgm')
    k('prep_wo:'); k.srd(32,16,448*896)
    k('s_sub_u32 s42, s2, 160')
    k('s_mul_i32 s50, s3, 100352\ns_lshl_b32 s45, s42, 6\ns_add_u32 s50, s50, s45')
    k('v_mul_u32_u24 v6, 7168, v3\nv_lshl_add_u32 v6, v4, 1, v6')
    k(f's_lshl_b32 s52, s42, 5\ns_lshl_b32 s44, s3, 3\ns_add_u32 s52, s52, s44\ns_lshl_b32 s52, s52, 10\ns_add_u32 s52, s52, {WO}')
    loads(8,32,896,[16,12]*4)
    k('s_mov_b32 s56, -1\ns_mov_b32 s57, 0')
    for q in (1,3,5,7):
        for j in (2,3): k(f'v_cndmask_b32 v{P+4*q+j}, 0, v{P+4*q+j}, s[56:57]')
    stores(8,1024)
    k('s_endpgm')
    k('prep_gu:'); k.srd(32,20,448*3584); k.srd(36,22,448*3584)
    k('s_sub_u32 s41, s2, 48'); k.divc(42,43,41,7,44)
    k('s_mul_i32 s50, s3, 401408\ns_lshl_b32 s45, s41, 5\ns_add_u32 s50, s50, s45')
    k('v_and_b32 v5, 15, v4\nv_mul_u32_u24 v6, 28672, v3\nv_lshl_add_u32 v6, v5, 1, v6')
    k(f's_lshl_b32 s53, s41, 7\ns_add_u32 s53, s53, {CSG}\ns_mov_b64 s[56:57], -1')
    k(f's_mul_i32 s52, s42, 200704\ns_add_u32 s52, s52, {WG}')
    k('s_mul_i32 s44, s3, 21\ns_add_u32 s44, s44, s43\ns_movk_i32 s55, 3072')
    k('s_mul_i32 s45, s43, 28\ns_mul_i32 s46, s3, 7\ns_add_u32 s45, s45, s46')
    k('s_cmp_lt_u32 s43, 3\ns_cselect_b32 s44, s44, s45\ns_cselect_b32 s55, s55, 1024\ns_lshl_b32 s44, s44, 10\ns_add_u32 s52, s52, s44')
    loads(7,None,3584,[16]*7,masks=[(0x0000ffff,32),(0xffff0000,36)])
    stores(7,'s55'); colsum(True)
    k('s_endpgm')
    k('prep_qkv:'); k.srd(32,14,448*2688)
    k.divc(42,43,2,3,44)
    k('s_mul_i32 s50, s3, 301056\ns_mul_i32 s45, s43, 896\ns_add_u32 s50, s50, s45\ns_mul_i32 s45, s42, 56\ns_add_u32 s50, s50, s45')
    k('v_mul_u32_u24 v6, 21504, v3\nv_lshl_add_u32 v6, v4, 1, v6')
    k(f's_lshl_b32 s53, s2, 7\ns_add_u32 s53, s53, {CSQ}\ns_cmp_lt_u32 s43, 2\ns_cselect_b64 s[56:57], -1, 0')
    k(f's_mul_i32 s52, s42, 84\ns_mul_i32 s44, s3, 21\ns_add_u32 s52, s52, s44\ns_add_u32 s52, s52, s43\ns_lshl_b32 s52, s52, 10\ns_add_u32 s52, s52, {WQ}')
    loads(7,32,2688,[16]*7)
    k('s_mov_b32 s58, 0x0fffffff\ns_mov_b32 s59, 0x0fffffff')
    for i in range(28): k(f'v_cndmask_b32 v{P+i}, 0, v{P+i}, s[58:59]')
    stores(7,3072); colsum(True)
    k.end()
    return k
```

```python
import sys
from core import *
from kp import gen_P
from kad import gen_A, gen_D
from kb import gen_B
from kce import gen_CE
def build(extra=0):
    P=gen_P(); A=gen_A('qkv_kernel',XA,STA); B=gen_B('attn_kernel')
    C=gen_CE('wo_kernel',OF,WO,32,XA,XB,STB); D=gen_D('gu_kernel')
    E1=gen_CE('down1_kernel',HF,WD,112,XB,XA,STA); E2=gen_CE('down2_kernel',HF,WD,112,XB,None,None)
    ks=[P,A,B,C,D,E1,E2]; seq=[P,A,B,C,D,E1,A,B,C,D,E2]
    if not os.environ.get('MULTI'):
        from fused import gen_F
        F=gen_F(); ks=[P,F]; seq=[P,F]
    if os.environ.get('DUP'): seq=[P,A,A,B,B,C,C,D,D,E1,E1,A,B,C,D,E2]
    if extra:
        Z=K('nop_kernel',256,256,0,vgpr=8); Z.end(); Z.L[-1]='s_endpgm'; ks.append(Z); seq=seq+[Z]*extra
    hdr=open('interleave_layers__softmax_full_mha__glu_gated_glu__prompt.s.ref').read().split('; Override')[0]
    out=hdr+'\n'.join(x.launch() for x in seq)+'\n.amdgcn_target "amdgcn-amd-amdhsa--gfx950"\n.text\n'
    out+='\n'.join(x.text() for x in ks)+'\n.section .rodata,"a"\n'+'\n'.join(x.kd() for x in ks)+'\n'
    return out
if __name__=='__main__':
    dst=sys.argv[1] if len(sys.argv)>1 else 'interleave_layers__softmax_full_mha__glu_gated_glu__prompt.s'
    open(dst,'w').write(build(int(sys.argv[2]) if len(sys.argv)>2 else 0))
```

```python
XA=0x0000000; XB=0x0200000; WQ=0x0400000; WO=0x0600000; WG=0x0700000; WD=0x0B00000
QF=0x0D00000; KV=0x0F00000; OF=0x1300000; HF=0x1500000
CSQ=0x1C00000; CSG=0x1C10000; STA=0x1C20000; STB=0x1C60000; WSEND=0x1D00000
ONES=0x3F803F80
import os
TS=int(os.environ.get('TS','0'))
def rg(r,n):
    return f'a[{r-1000}:{r-1000+n-1}]' if r>=1000 else f'v[{r}:{r+n-1}]'
class K:
    def __init__(s,name,nwg,block,lds,vgpr=256,sgpr=96,agpr=0):
        s.name=name; s.nwg=nwg; s.block=block; s.lds=lds; s.vgpr=vgpr; s.agpr=agpr; s.sgpr=sgpr
        s.L=[]; s.vm=[]; s.lg=[]
        s(f'.globl {name}\n.p2align 8\n.type {name},@function\n{name}:')
    def __call__(s,t): s.L.append(t)
    def vmop(s,t,tag): s(t); s.vm.append(tag)
    def wvm(s,tag):
        idx=[i for i,x in enumerate(s.vm) if x==tag]
        if not idx: return
        n=len(s.vm)-1-idx[-1]
        assert n<=63,(s.name,tag,n)
        s(f's_waitcnt vmcnt({n})'); s.vm=s.vm[idx[-1]+1:]
    def wvm0(s): s('s_waitcnt vmcnt(0)'); s.vm=[]
    def lgop(s,t,tag): s(t); s.lg.append(tag)
    def wlg(s,tag):
        idx=[i for i,x in enumerate(s.lg) if x==tag]
        if not idx: return
        n=len(s.lg)-1-idx[-1]
        assert n<=15,(s.name,tag,n)
        s(f's_waitcnt lgkmcnt({n})'); s.lg=s.lg[idx[-1]+1:]
    def wlg0(s): s('s_waitcnt lgkmcnt(0)'); s.lg=[]
    def nop(s,n):
        while n>0:
            m=min(n,16); s(f's_nop {m-1}'); n-=m
    def mfma(s,d,a,b,c=None):
        s(f'v_mfma_f32_32x32x16_bf16 v[{d}:{d+15}], {rg(a,4)}, {rg(b,4)}, '+(f'v[{d}:{d+15}]' if c is None else c))
    def srd(s,d,b,n):
        s(f's_mov_b32 s{d}, s{b}\ns_mov_b32 s{d+1}, s{b+1}\ns_mov_b32 s{d+2}, {n}\ns_mov_b32 s{d+3}, 0x00020000')
    def ld4(s,v,voff,srd,soff,imm,tag):
        s.vmop(f'buffer_load_dwordx4 {rg(v,4)}, v{voff}, s[{srd}:{srd+3}], {soff} offen offset:{imm}',tag)
    def st4(s,v,voff,srd,soff,imm,tag='st'):
        s.vmop(f'buffer_store_dwordx4 v[{v}:{v+3}], v{voff}, s[{srd}:{srd+3}], {soff} offen offset:{imm}',tag)
    def dma(s,voff,srd,soff,imm,tag):
        s.vmop(f'buffer_load_dwordx4 v{voff}, s[{srd}:{srd+3}], {soff} offen offset:{imm} lds',tag)
    def dsr(s,v,addr,off,tag):
        assert 0<=off<65536
        s.lgop(f'ds_read_b128 v[{v}:{v+3}], v{addr} offset:{off}',tag)
    def dsw(s,addr,v,off,tag='w'):
        assert 0<=off<65536
        s.lgop(f'ds_write_b128 v{addr}, v[{v}:{v+3}] offset:{off}',tag)
    def divc(s,q,r,x,c,tmp):
        m=(1<<32)//c+1
        s(f's_mul_hi_u32 s{q}, s{x}, {m}\ns_mul_i32 s{tmp}, s{q}, {c}\ns_sub_u32 s{r}, s{x}, s{tmp}')
    def prologue(s):
        s(f's_cmp_ge_u32 s2, {s.nwg}\ns_cbranch_scc1 {s.name}_end')
        if TS: s('s_memrealtime s[88:89]')
        s.ts(0)
        s('s_load_dwordx2 s[4:5], s[0:1], 72')
        s('v_lshrrev_b32 v2, 6, v0\nv_and_b32 v0, 63, v0\nv_lshlrev_b32 v1, 4, v0\nv_readfirstlane_b32 s3, v2')
    def ws_srd(s):
        s('s_waitcnt lgkmcnt(0)'); s.srd(8,4,WSEND)
    def ts(s,i):
        if TS: s(f's_memtime s[{64+2*i}:{65+2*i}]'); s.nts=max(getattr(s,'nts',0),i+1)
    def tsflush(s):
        if not TS: return
        s.tsn=getattr(s,'tsn',0)+1; L=f'{s.name}_ts{s.tsn}'
        s(f's_cmp_lg_u32 s3, 0\ns_cbranch_scc1 {L}')
        s('s_load_dwordx2 s[92:93], s[0:1], 64\ns_waitcnt vmcnt(0)\ns_memrealtime s[90:91]\ns_waitcnt lgkmcnt(0)\ns_mov_b64 exec, 1\nv_mov_b32 v120, 0\nv_mov_b32 v121, s90\nglobal_atomic_umax v120, v121, s[92:93] offset:240')
        s('v_mov_b32 v121, s88\nglobal_atomic_umax v120, v121, s[92:93] offset:244\ns_sub_u32 s94, 0, s88\nv_mov_b32 v121, s94\nglobal_atomic_umax v120, v121, s[92:93] offset:248\ns_sub_u32 s94, 0, s90\nv_mov_b32 v121, s94\nglobal_atomic_umax v120, v121, s[92:93] offset:236')
        n=s.nts
        s(f's_and_b32 s94, s2, 127\ns_cmp_lg_u32 s94, 0\ns_cbranch_scc1 {L}\ns_cmp_lg_u32 s3, 0\ns_cbranch_scc1 {L}\ns_waitcnt lgkmcnt(0)')
        s('s_lshr_b32 s94, s2, 6\ns_lshl_b32 s94, s94, 6\nv_mov_b32 v120, s94')
        for i in range(n): s(f's_sub_u32 s95, s{64+2*i}, s64\nv_mov_b32 v121, s95\nglobal_store_dword v120, v121, s[92:93] offset:{4*i}')
        s(f's_sub_u32 s95, s90, s88\nv_mov_b32 v121, s95\nglobal_store_dword v120, v121, s[92:93] offset:60')
        s(f'{L}:')
    def end(s):
        s(f'{s.name}_end:\ns_endpgm')
    def text(s): return '\n'.join(s.L)
    def kd(s):
        return (f'.p2align 6\n.amdhsa_kernel {s.name}\n  .amdhsa_next_free_vgpr {s.vgpr+s.agpr}\n  .amdhsa_next_free_sgpr {s.sgpr}\n'
                f'  .amdhsa_accum_offset {s.vgpr}\n  .amdhsa_group_segment_fixed_size 0\n  .amdhsa_kernarg_size 80\n'
                '  .amdhsa_user_sgpr_count 2\n  .amdhsa_user_sgpr_kernarg_segment_ptr 1\n  .amdhsa_system_sgpr_workgroup_id_x 1\n.end_amdhsa_kernel')
    def launch(s): return f'; @launch kernel={s.name} grid=({s.nwg},1,1) block=({s.block},1,1) lds={s.lds}'
    def ld_stats(s,b,vtmp,sbase,tag):
        s(f'v_and_b32 v{vtmp}, 31, v0\nv_mul_u32_u24 v{vtmp}, 112, v{vtmp}\nv_lshrrev_b32 v{vtmp+1}, 5, v0\nv_mul_u32_u24 v{vtmp+1}, 56, v{vtmp+1}\nv_add_u32 v{vtmp}, v{vtmp}, v{vtmp+1}')
        for i in range(3): s.ld4(b+4*i,vtmp,8,sbase,16*i,tag)
        s.vmop(f'buffer_load_dwordx2 v[{b+12}:{b+13}], v{vtmp}, s[8:11], {sbase} offen offset:48',tag)
    def fin_stats(s,b,vm,vr):
        for i in range(1,7):
            s(f'v_add_f32 v{b}, v{b}, v{b+2*i}\nv_add_f32 v{b+1}, v{b+1}, v{b+2*i+1}')
        s(f'v_mov_b32 v{b+2}, v{b}\nv_mov_b32 v{b+3}, v{b+1}\ns_nop 1')
        s(f'v_permlane32_swap_b32 v{b}, v{b+2}\nv_permlane32_swap_b32 v{b+1}, v{b+3}\ns_nop 1')
        s(f'v_add_f32 v{b}, v{b}, v{b+2}\nv_add_f32 v{b+1}, v{b+1}, v{b+3}')
        import struct
        inv=struct.unpack('<I',struct.pack('<f',1.0/448))[0]; eps=struct.unpack('<I',struct.pack('<f',1e-5))[0]
        s(f'v_mul_f32 v{vm}, 0x{inv:x}, v{b}\nv_mul_f32 v{b+1}, 0x{inv:x}, v{b+1}')
        s(f'v_fma_f32 v{b+1}, -v{vm}, v{vm}, v{b+1}\nv_max_f32 v{b+1}, 0, v{b+1}\nv_add_f32 v{b+1}, 0x{eps:x}, v{b+1}\nv_rsq_f32 v{vr}, v{b+1}\ns_nop 0')
    def st_stats(s,p,t,sone,voff,soff):
        s(f'v_mov_b32 v{t}, 0\nv_mov_b32 v{t+1}, 0')
        for i in range(8):
            s(f'v_dot2_f32_bf16 v{t}, v{p+i}, s{sone}, v{t}')
            s(f'v_dot2_f32_bf16 v{t+1}, v{p+i}, v{p+i}, v{t+1}')
        s('s_nop 3')
        s(f'v_permlane32_swap_b32 v{t}, v{t+1}\ns_nop 1\nv_add_f32 v{t}, v{t}, v{t+1}')
        s.vmop(f'buffer_store_dword v{t}, v{voff}, s[8:11], {soff} offen','st')
def f2u(x):
    import struct
    return struct.unpack('<I',struct.pack('<f',x))[0]
```

```python
from core import *
import math
X0=1000
ACC=16
PD=int(os.environ.get('PD','3'))
def chunk_ops(k,c):
    def x(i):
        def f():
            if i==0: k(f's_add_u32 s24, s22, {c*12288}\ns_mov_b32 m0, s24\ns_add_u32 s25, s23, {c*12288}\ns_add_u32 s26, s21, {c*4096}')
            k.ld4(X0+16*c+4*i,1,8,'s26',1024*i,f'c{c}')
        return f
    def w(i): return lambda: k.dma(1,8,'s25',1024*i,f'c{c}')
    return [x(0),w(0),x(1),w(1),x(2),w(2),x(3)]
def lds_rd(k,v,off,tag):
    k.dsr(v,1+off//65536,off%65536,tag)
def phase1(k,WB,swapv,later,tail):
    def rd(ks):
        if ks%4==0:
            k.wvm(f'c{ks//4}'); k('s_barrier')
            if ks//4 in (0,1,4): k.ts(2+[0,1,4].index(ks//4))
        for p in range(3): lds_rd(k,WB+12*(ks%3)+4*p,(ks*3+p)*1024,f'r{ks}')
    rd(0); rd(1)
    q=[]
    for ks in range(28):
        if ks%4==0:
            assert not q
            c=ks//4; q=list(chunk_ops(k,c+PD) if c+PD<7 else [])+list(later.get(c,[]))
            n=len(q); slot=0
        k.wlg(f'r{ks}')
        for p in range(3):
            w=WB+12*(ks%3)+4*p; x=X0+4*ks
            a,b=(x,w) if (swapv and p==2) else (w,x)
            k.mfma(ACC+16*p,a,b,'0' if ks==0 else None)
            if p==0:
                if ks+2<28: rd(ks+2)
                else: tail(ks)
            slot+=1
            while q and (n-len(q))*11<slot*n: q.pop(0)()
def gen_A(name,xsrc,stsrc):
    k=K(name,256,256,86016+1024,vgpr=208,agpr=112)
    k.prologue()
    k('s_and_b32 s12, s2, 3\ns_lshl_b32 s12, s12, 2\ns_bfe_u32 s13, s2, 0x20003\ns_add_u32 s12, s12, s13')
    k('s_bfe_u32 s13, s2, 0x10002\ns_lshl_b32 s13, s13, 3\ns_lshr_b32 s14, s2, 5\ns_add_u32 s13, s13, s14')
    k('s_lshl_b32 s12, s12, 2\ns_add_u32 s12, s12, s3')
    k(f's_mul_i32 s20, s13, 86016\ns_add_u32 s20, s20, {WQ}\ns_mul_i32 s21, s12, 28672\ns_add_u32 s21, s21, {xsrc}')
    k('v_add_u32 v2, 65536, v1')
    k('s_mul_i32 s22, s3, 3072\ns_add_u32 s23, s20, s22')
    WB=64; ST=100; CQ=116; CK=132; RS=148; PK=180
    k(f's_mul_i32 s27, s12, 3584\ns_add_u32 s27, s27, {stsrc}')
    k(f's_mul_i32 s28, s13, 384\ns_add_u32 s28, s28, {CSQ}')
    k('v_lshrrev_b32 v6, 5, v0\nv_lshlrev_b32 v6, 6, v6\nv_and_b32 v7, 31, v0\nv_lshlrev_b32 v7, 2, v7')
    k.ws_srd()
    for c in range(PD):
        for o in chunk_ops(k,c): o()
    k.ts(1)
    lat=[lambda: k.ld_stats(ST,4,'s27','e')]
    lat+=[(lambda i=i: k.ld4(CQ+4*i,6,8,'s28',16*(i&3)+128*(i>>2),'e')) for i in range(8)]
    lat+=[lambda: k.vmop('buffer_load_dword v8, v7, s[8:11], s28 offen offset:256','e')]
    phase1(k,WB,True,{7-PD:lat},lambda ks:None); k.ts(5)
    k.wvm('e')
    k.fin_stats(ST,9,10)
    k('v_mul_f32 v11, v9, v10')
    k(f's_lshl_b32 s29, s3, 8\ns_add_u32 s29, s29, 86016\nv_lshrrev_b32 v12, 5, v0\nv_lshl_add_u32 v13, v12, 7, v7\nv_add_u32 v13, s29, v13')
    k('s_mov_b32 s30, 0\ns_mov_b32 s31, -1\nv_cndmask_b32 v14, v10, v11, s[30:31]\nds_write_b32 v13, v14')
    k('v_lshl_add_u32 v12, v12, 4, s29\ns_waitcnt lgkmcnt(0)')
    for g in range(4):
        k(f'ds_read_b128 v[{RS+4*g}:{RS+4*g+3}], v12 offset:{32*g}')
        k(f'ds_read_b128 v[{RS+16+4*g}:{RS+19+4*g}], v12 offset:{128+32*g}')
    c=f2u(28**-0.5*math.log2(math.e))
    k(f'v_mul_f32 v12, 0x{c:x}, v10')
    k(f's_lshl_b32 s14, s13, 6\ns_add_u32 s14, s14, s12\ns_lshl_b32 s15, s14, 11\ns_add_u32 s15, s15, {QF}\ns_lshl_b32 s16, s14, 12\ns_add_u32 s16, s16, {KV}')
    k(f's_mov_b32 s34, 0x{ONES:x}\nv_mov_b32 v15, s34\ns_mov_b32 s32, 0x10000000\ns_mov_b32 s33, 0x10000000')
    for i in range(16): k(f'v_fma_f32 v{ACC+16+i}, -v9, v{CK+i}, v{ACC+16+i}')
    for i in range(16): k(f'v_mul_f32 v{ACC+16+i}, v{ACC+16+i}, v10')
    for i in range(8): k(f'v_cvt_pk_bf16_f32 v{PK+8+i}, v{ACC+16+2*i}, v{ACC+17+2*i}')
    k(f'v_cndmask_b32 v{PK+14}, v{PK+14}, v15, s[30:31]')
    k.st4(PK+8,1,8,'s16',0); k.st4(PK+12,1,8,'s16',1024)
    k('s_waitcnt lgkmcnt(0)')
    for i in range(16): k(f'v_mul_f32 v{ACC+32+i}, v{ACC+32+i}, v{RS+i}')
    for i in range(16): k(f'v_fma_f32 v{ACC+32+i}, -v{RS+16+i}, v8, v{ACC+32+i}')
    for i in range(8): k(f'v_cvt_pk_bf16_f32 v{PK+16+i}, v{ACC+32+2*i}, v{ACC+33+2*i}')
    for i in range(8): k(f'v_cndmask_b32 v{PK+16+i}, v{PK+16+i}, v15, s[32:33]')
    k.st4(PK+16,1,8,'s16',2048); k.st4(PK+20,1,8,'s16',3072)
    for i in range(16): k(f'v_fma_f32 v{ACC+i}, -v9, v{CQ+i}, v{ACC+i}')
    for i in range(16): k(f'v_mul_f32 v{ACC+i}, v{ACC+i}, v12')
    for i in range(8): k(f'v_cvt_pk_bf16_f32 v{PK+i}, v{ACC+2*i}, v{ACC+2*i+1}')
    k.st4(PK,1,8,'s15',0); k.st4(PK+4,1,8,'s15',1024)
    k.ts(6); k.tsflush()
    k.end(); return k

def cs_ops(cs,tile): return [(4,('dsr',cs+4*g,tile*128+16*g,f'cs{tile}')) for g in range(4)]
def glu_ops(acc,cs,pk,tile):
    ops=[(0,('wcs',f'cs{tile}'))]
    for half in range(2):
        I=range(4*half,4*half+4)
        for i in I: ops.append((4,f'v_fma_f32 v{acc+i}, -v10, v{cs+i}, v{acc+i}'))
        for i in I: ops.append((4,f'v_mul_f32 v{acc+i}, v{acc+i}, v11'))
        for i in I:
            ops.append((8,f'v_exp_f32 v{acc+i}, v{acc+i}'))
            ops.append((4,f'v_fma_f32 v{acc+8+i}, -v10, v{cs+8+i}, v{acc+8+i}'))
        for i in I: ops.append((4,f'v_fma_f32 v{acc+i}, v{acc+i}, v12, v12'))
        for i in I: ops.append((8,f'v_rcp_f32 v{acc+i}, v{acc+i}'))
        for i in I: ops.append((4,f'v_mul_f32 v{acc+i}, v{acc+i}, v{acc+8+i}'))
    for i in range(4): ops.append((4,f'v_cvt_pk_bf16_f32 v{pk+i}, v{acc+2*i}, v{acc+2*i+1}'))
    ops.append((8,('st',pk,tile)))
    return ops
def emit_op(k,o):
    if isinstance(o,str): k(o)
    elif o[0]=='dsr': k.dsr(o[1],13,o[2],o[3])
    elif o[0]=='wcs': k.wlg(o[1])
    elif o[0]=='st':
        t=o[2]; k.st4(o[1],1,8,'s28' if t<4 else 's29',1024*(t&3))
def gen_D(name):
    CSL=143360
    k=K(name,256,256,CSL+1024,vgpr=224,agpr=112)
    k.prologue()
    k('s_and_b32 s12, s2, 1\ns_lshl_b32 s12, s12, 3\ns_bfe_u32 s13, s2, 0x30003\ns_add_u32 s12, s12, s13')
    k('s_bfe_u32 s13, s2, 0x20001\ns_lshl_b32 s13, s13, 2\ns_lshr_b32 s14, s2, 6\ns_add_u32 s13, s13, s14')
    k('s_lshl_b32 s12, s12, 2\ns_add_u32 s12, s12, s3')
    k(f's_mul_i32 s20, s13, 200704\ns_add_u32 s20, s20, {WG}\ns_mul_i32 s21, s12, 28672\ns_add_u32 s21, s21, {XB}')
    k('v_add_u32 v2, 65536, v1\nv_add_u32 v3, 65536, v2')
    k('s_mul_i32 s22, s3, 3072\ns_add_u32 s23, s20, s22')
    WB=128; ST=164; CSR=180; PK=212
    k(f's_mul_i32 s27, s12, 3584\ns_add_u32 s27, s27, {STB}')
    k(f's_mul_i32 s30, s13, 896\ns_add_u32 s30, s30, {CSG}')
    k(f's_mul_i32 s28, s12, 112\ns_mul_i32 s29, s13, 7\ns_add_u32 s28, s28, s29\ns_lshl_b32 s28, s28, 10\ns_add_u32 s28, s28, {HF}\ns_add_u32 s29, s28, 4096')
    k(f'v_lshrrev_b32 v13, 5, v0\nv_lshlrev_b32 v13, 6, v13\nv_add_u32 v13, {CSL}, v13')
    k('s_mul_i32 s31, s3, 7168\ns_add_u32 s32, s31, s20')
    k.ws_srd()
    for c in range(PD):
        for o in chunk_ops(k,c): o()
    k.ts(1)
    slot={3:86016,4:114688,5:0,6:28672}
    def tile_ops(t):
        def w(i):
            def f():
                if i%4==0: k(f's_add_u32 s24, s31, {slot[t]+1024*i}\ns_mov_b32 m0, s24\ns_add_u32 s25, s32, {t*28672+1024*i}')
                k.dma(1,8,'s25',1024*(i&3),f't{t}')
            return f
        return [w(i) for i in range(7)]
    def csdma(): k(f's_mov_b32 m0, {CSL}\ns_nop 0'); k.dma(1,8,'s30',0,'e')
    later={7-PD:[csdma,lambda: k.ld_stats(ST,4,'s27','e')]+tile_ops(3)}
    later[min(6,8-PD)]=later.get(min(6,8-PD),[])+tile_ops(4)
    NB=9; RA=4
    def wb(g): return WB+4*((g+3)%NB)
    def rd(g):
        t=3+g//28; q=g%28
        if q==0: k.wvm(f't{t}'); k('s_barrier'); k.ts(3+t)
        lds_rd(k,wb(g),slot[t]+q*1024,f'g{g}')
    def tail(ks):
        if ks==27:
            for g in range(4): rd(g)
    phase1(k,WB,False,later,tail); k.ts(5)
    k.wvm('e')
    sv=k.L; k.L=[]
    k.fin_stats(ST,10,9)
    c=f2u(-math.log2(math.e))
    k(f'v_sqrt_f32 v12, v{ST+1}\nv_mul_f32 v11, 0x{c:x}, v9')
    Q=[(0,4,l) for l in '\n'.join(k.L).split('\n')]; k.L=sv
    for e in range(7):
        av=1 if e<3 else 28*(e-2)+2
        if e==0: Q+=[(0,)+o for o in cs_ops(CSR,0)]
        g=glu_ops(ACC+16*e,CSR+16*(e&1),PK+4*(e&1),e)
        nx=cs_ops(CSR+16*((e+1)&1),e+1) if e<6 else []
        Q+=[(av,)+o for o in g[:9]+nx+g[9:]]
    bud=0; BUD=int(os.environ.get('BUD','22')); dm=[]
    for g in range(112):
        t=3+g//28; q=g%28
        if q==0 and t<5: dm=tile_ops(t+2)
        k.wlg(f'g{g}')
        k.mfma(ACC+16*t,wb(g),X0+4*q,'0' if q==0 else None)
        if g+RA<112: rd(g+RA)
        if dm and q%3==1: dm.pop(0)(); continue
        bud=min(bud+BUD,BUD+4)
        while Q and Q[0][0]<=g and bud>=Q[0][1]:
            o=Q.pop(0); bud-=o[1]; emit_op(k,o[2])
    k.ts(10)
    first=True
    for o in Q:
        if o[0]>111 and first: k.nop(12); first=False
        emit_op(k,o[2])
    print('D leftover ops',len(Q))
    k.ts(11); k.tsflush()
    k.end(); return k
```

```python
from core import *
def gen_B(name):
    FL=49152
    k=K(name,256,256,FL+64)
    n=name
    k.prologue()
    NT=16
    k('s_and_b32 s12, s2, 7\ns_lshl_b32 s12, s12, 1\ns_bfe_u32 s13, s2, 0x10003\ns_add_u32 s12, s12, s13\ns_lshr_b32 s13, s2, 4')
    k(f's_lshl_b32 s14, s12, 6\ns_lshl_b32 s15, s13, 2\ns_add_u32 s15, s15, s14\ns_lshl_b32 s15, s15, 11\ns_add_u32 s15, s15, {QF}\ns_add_u32 s16, s15, 4096')
    k(f's_lshl_b32 s17, s3, 4\ns_add_u32 s17, s17, s14\ns_lshl_b32 s17, s17, 12\ns_add_u32 s17, s17, {KV}')
    k('s_mov_b32 s19, 0')
    k.ws_srd()
    Q=16; O=48; S=112; P=144; R=152; ND=6
    def kv1(t,i):
        if i==0: k(f's_add_u32 s18, s17, {4096*t}')
        k.ld4(R+16*(t%ND)+4*i,1,8,'s18',1024*i,f'k{t}' if i<2 else f'v{t}')
    def start(real):
        def q(i):
            if real: k.ld4(Q+4*i,1,8,'s15' if i<4 else 's16',1024*(i&3),f'q{i//2}')
            else: k.vmop('buffer_load_dword v3, v1, s[8:11], s15 offen',f'q{i//2}')
        kv1(0,0); q(0); kv1(0,1); q(1); q(2); q(3); kv1(0,2); kv1(0,3)
        for i in range(4,8): q(i)
    start(True)
    k(f's_branch {n}_go')
    k(f'{n}_again:')
    sv=k.vm; k.vm=[]
    start(False)
    k.vm=sv
    k(f'{n}_go:')
    for i in range(4): kv1(1,i)
    pend=[(t,i) for t in range(2,NT) for i in range(4)]
    units=[(t,q) for t in range(NT) for q in range(4)]; NU=len(units)
    def qk(u,h):
        t,q=units[u]
        if h==0 and q==0: k.wvm(f'k{t}')
        if h==0 and t==0: k.wvm(f'q{q}')
        k.mfma(S+16*(u&1),R+16*(t%ND)+4*h,Q+8*q+4*h,'0' if h==0 else None)
    def pv(u,h):
        t,q=units[u]
        if h==0 and q==0: k.wvm(f'v{t}')
        k.mfma(O+16*q,R+16*(t%ND)+8+4*h,P+4*h,'0' if (t==0 and h==0) else None)
    k.ts(1); qk(0,0); k.ts(2); qk(0,1); k.nop(11)
    for u in range(NU):
        s=S+16*(u&1)
        def eg(g):
            for i in range(4): k(f'v_exp_f32 v{s+4*g+i}, v{s+4*g+i}')
            k(f'v_cvt_pk_bf16_f32 v{P+2*g}, v{s+4*g}, v{s+4*g+1}\nv_cvt_pk_bf16_f32 v{P+2*g+1}, v{s+4*g+2}, v{s+4*g+3}')
        def ld():
            if pend and (pend[0][0]<ND or u>4*(pend[0][0]-ND)+4): kv1(*pend.pop(0))
        if u in (4,8,16,32): k.ts(2+[0,4,8,16,32].index(u))
        if u+1<NU: qk(u+1,0)
        eg(0)
        if u>0: pv(u-1,1)
        eg(1)
        if u+1<NU: qk(u+1,1)
        if u<16: ld()
        eg(2)
        pv(u,0)
        ld()
        eg(3)
    assert not pend
    k.nop(2); pv(NU-1,1); k.ts(7)
    for q in range(4):
        k(f's_sub_u32 s20, s3, {q+1}\ns_and_b32 s20, s20, 3\ns_lshl_b32 s20, s20, 12\ns_add_u32 s20, s20, {12288*q}\nv_add_u32 v{4+q}, s20, v1')
    k('s_mul_i32 s20, s3, 12288\nv_add_u32 v2, s20, v1')
    k(f's_lshl_b32 s28, s3, 2\ns_add_u32 s28, s28, {FL}\nv_mov_b32 v9, s28\nv_mov_b32 v10, {FL}\nv_mov_b32 v8, 0x1f800000')
    k(f's_lshl_b32 s25, s13, 2\ns_add_u32 s25, s25, s3\ns_lshl_b32 s25, s25, 5\ns_lshl_b32 s26, s12, 1\ns_add_u32 s25, s25, s26\ns_lshl_b32 s25, s25, 10\ns_add_u32 s25, s25, {OF}')
    A=S
    for q in range(4):
        if q==3: k.nop(4)
        k(f's_cmp_eq_u32 s3, {q}\ns_cbranch_scc1 {n}_own{q}')
        for g in range(4): k(f'ds_write_b128 v{4+q}, v[{O+16*q+4*g}:{O+16*q+4*g+3}] offset:{1024*g}')
        k(f's_branch {n}_nx{q}\n{n}_own{q}:')
        for i in range(16): k(f'v_mov_b32 v{A+i}, v{O+16*q+i}')
        k(f'{n}_nx{q}:')
    k('s_mov_b64 s[30:31], 0')
    for q in range(4):
        k(f'v_cmp_nge_f32 vcc, 0x5d800000, v{O+16*q+12}\nv_cmp_nge_f32 s[28:29], v{O+16*q+12}, v8\ns_or_b32 s31, s31, vcc_hi\ns_or_b32 s31, s31, s29')
    k('s_cmp_lg_u32 s31, 0\ns_cselect_b32 s27, 1, 0\nv_mov_b32 v8, s27\nds_write_b32 v9, v8\ns_waitcnt lgkmcnt(0)\ns_barrier'); k.ts(8)
    k('ds_read_b128 v[4:7], v10')
    for j in range(12): k(f'ds_read_b128 v[{R+4*j}:{R+4*j+3}], v2 offset:{1024*j}')
    k(f's_cmp_lg_u32 s19, 0\ns_cbranch_scc1 {n}_fin')
    k('s_waitcnt lgkmcnt(12)\nv_or3_b32 v8, v4, v5, v6\nv_or_b32 v8, v8, v7\ns_nop 0\nv_readfirstlane_b32 s27, v8')
    k(f's_cmp_lg_u32 s27, 0\ns_cbranch_scc1 {n}_slow')
    k(f'{n}_fin:')
    for j in range(3):
        k(f's_waitcnt lgkmcnt({8-4*j})')
        for i in range(16): k(f'v_add_f32 v{A+i}, v{A+i}, v{R+16*j+i}')
    k(f'v_mov_b32 v8, v{A+12}\nv_mov_b32 v9, v{A+12}\ns_nop 1\nv_permlane32_swap_b32 v8, v9\ns_nop 1\nv_rcp_f32 v9, v9\ns_nop 0')
    for i in range(16): k(f'v_mul_f32 v{A+i}, v{A+i}, v9')
    for i in range(8): k(f'v_cvt_pk_bf16_f32 v{P+i}, v{A+2*i}, v{A+2*i+1}')
    k.st4(P,1,8,'s25',0); k.st4(P+4,1,8,'s25',1024); k.ts(9); k.tsflush()
    k('s_endpgm')
    k(f'{n}_slow:')
    M=8
    k('s_waitcnt lgkmcnt(0)\ns_barrier')
    for q in range(4): k(f'v_mov_b32 v{M+q}, 0xff800000')
    k(f's_mov_b32 s18, s17\ns_mov_b32 s27, {NT}')
    k(f'{n}_mx:')
    k(f'buffer_load_dwordx4 v[{R}:{R+3}], v1, s[8:11], s18 offen\nbuffer_load_dwordx4 v[{R+4}:{R+7}], v1, s[8:11], s18 offen offset:1024\ns_waitcnt vmcnt(0)')
    for q in range(4):
        k.mfma(S,R,Q+8*q,'0'); k.mfma(S,R+4,Q+8*q+4); k.nop(13)
        for i in range(8): k(f'v_max3_f32 v{M+q}, v{M+q}, v{S+2*i}, v{S+2*i+1}')
        k.nop(2)
    k(f's_add_u32 s18, s18, 4096\ns_sub_u32 s27, s27, 1\ns_cmp_lg_u32 s27, 0\ns_cbranch_scc1 {n}_mx')
    k('s_lshl_b32 s20, s3, 10\nv_lshl_add_u32 v12, v0, 2, s20\nv_and_b32 v13, 31, v0\nv_lshlrev_b32 v13, 2, v13')
    for q in range(4): k(f'ds_write_b32 v12, v{M+q} offset:{256*q}')
    k('s_waitcnt lgkmcnt(0)\ns_barrier\ns_mov_b32 s28, 0\ns_mov_b32 s29, -1')
    for q in range(4):
        for w in range(4):
            for h in range(2): k(f'ds_read_b32 v{S+2*w+h}, v13 offset:{1024*w+256*q+128*h}')
        k('s_waitcnt lgkmcnt(0)')
        for i in range(4): k(f'v_max3_f32 v{M+q}, v{M+q}, v{S+2*i}, v{S+2*i+1}')
        k(f'v_sub_f32 v{M+q}, 0, v{M+q}\nv_cvt_pk_bf16_f32 v14, v{M+q}, v{M+q}\nv_lshlrev_b32 v14, 16, v14\nv_sub_f32 v15, v{M+q}, v14')
        k(f'v_cvt_pk_bf16_f32 v14, v14, v15\nv_cndmask_b32 v{Q+8*q+6}, v{Q+8*q+6}, v14, s[28:29]')
    k(f's_barrier\ns_mov_b32 s19, 1\ns_branch {n}_again')
    k.end(); return k
```

```python
from core import *
def gen_CE(name,src,wsrc,KS,res,dst,stdst):
    k=K(name,224,256,49152)
    k.prologue()
    if dst is None: k('s_load_dwordx2 s[6:7], s[0:1], 56')
    k('s_and_b32 s12, s2, 7\ns_lshr_b32 s13, s2, 3'); k.divc(14,15,13,7,16)
    k('s_lshl_b32 s12, s12, 2\ns_add_u32 s12, s12, s14')
    k('s_lshr_b32 s16, s3, 1\ns_and_b32 s17, s3, 1')
    k('s_lshl_b32 s12, s12, 1\ns_add_u32 s12, s12, s16\ns_xor_b32 s13, s12, 1')
    k('s_lshl_b32 s15, s15, 1\ns_add_u32 s14, s15, s17\ns_xor_b32 s15, s14, 1')
    per=KS//4
    k(f's_mul_i32 s18, s3, {per*1024}')
    for d,sr,b in ((20,12,src),(21,13,src),(22,14,wsrc),(23,15,wsrc)):
        k(f's_mul_i32 s{d}, s{sr}, {KS*1024}\ns_add_u32 s{d}, s{d}, s18\ns_add_u32 s{d}, s{d}, {b}')
    k.ws_srd()
    if dst is None: k.srd(32,6,2048*896)
    ACC=16; R=80; ND=8; RES=208
    def ld(q):
        if q and q%4==0:
            for d in range(20,24): k(f's_add_u32 s{d}, s{d}, 4096')
        for i in range(4): k.ld4(R+16*(q%ND)+4*i,1,8,f's{20+i}',1024*(q&3),f'k{q}')
    for q in range(ND): ld(q)
    k(f's_mul_i32 s24, s12, 28\ns_lshl_b32 s25, s14, 1\ns_add_u32 s24, s24, s25\ns_lshl_b32 s24, s24, 10\ns_add_u32 s25, s24, {res}')
    k.ld4(RES,1,8,'s25',0,'res'); k.ld4(RES+4,1,8,'s25',1024,'res')
    for q in range(per):
        if q==0: k.ts(1)
        k.wvm(f'k{q}')
        if q in (0,4): k.ts(2+q//4)
        b=R+16*(q%ND)
        for s in range(4): k.mfma(ACC+16*s,b+8+4*(s&1),b+4*(s>>1),'0' if q==0 else None)
        if q+ND<per: ld(q+ND)
    k.ts(4)
    for s in range(1,4): k(f's_xor_b32 s26, s3, {s}\ns_mul_i32 s26, s26, 12288\ns_add_u32 s26, s26, {(s-1)*4096}\nv_add_u32 v{1+s}, s26, v1')
    k('s_mul_i32 s26, s3, 12288\nv_add_u32 v5, s26, v1')
    for s in range(1,4):
        for g in range(4): k.dsw(1+s,ACC+16*s+4*g,1024*g)
    k.wlg0(); k('s_barrier'); k.ts(5)
    for j in range(12): k.dsr(R+4*j,5,1024*j,f'r{j//4}')
    k('v_and_b32 v6, 31, v0\nv_lshrrev_b32 v7, 5, v0')
    k.wvm('res')
    for i in range(8):
        k(f'v_lshlrev_b32 v8, 16, v{RES+i}\nv_and_b32 v9, 0xffff0000, v{RES+i}\nv_add_f32 v{ACC+2*i}, v{ACC+2*i}, v8\nv_add_f32 v{ACC+2*i+1}, v{ACC+2*i+1}, v9')
    for j in range(3):
        k.wlg(f'r{j}')
        for i in range(16): k(f'v_add_f32 v{ACC+i}, v{ACC+i}, v{R+16*j+i}')
    for i in range(8): k(f'v_cvt_pk_bf16_f32 v{RES+i}, v{ACC+2*i}, v{ACC+2*i+1}')
    if dst is None:
        k('v_mul_u32_u24 v6, 896, v6\nv_lshl_add_u32 v6, v7, 4, v6\ns_mul_i32 s25, s12, 28672\ns_lshl_b32 s26, s14, 6\ns_add_u32 s25, s25, s26')
        k.st4(RES,6,32,'s25',0); k.st4(RES+4,6,32,'s25',32)
    else:
        k(f's_add_u32 s25, s24, {dst}')
        k.st4(RES,1,8,'s25',0); k.st4(RES+4,1,8,'s25',1024)
        k(f'v_mul_u32_u24 v6, 112, v6\nv_lshl_add_u32 v6, v7, 2, v6\ns_mul_i32 s25, s12, 3584\ns_lshl_b32 s26, s14, 3\ns_add_u32 s25, s25, s26\ns_add_u32 s25, s25, {stdst}\ns_mov_b32 s27, 0x{ONES:x}')
        k.st_stats(RES,10,27,6,'s25')
    k.ts(6); k.tsflush()
    k.end(); return k
```

```python
from core import *
def gen_P():
    k=K('prep_kernel',230,256,4*8704+1024,vgpr=128)
    k.prologue()
    k('s_load_dwordx4 s[12:15], s[0:1], 0\ns_load_dwordx2 s[16:17], s[0:1], 16\ns_load_dwordx4 s[20:23], s[0:1], 32\ns_load_dwordx2 s[24:25], s[0:1], 48')
    k(f's_mov_b32 s40, 0x{ONES:x}')
    k('v_and_b32 v2, 31, v0\nv_lshrrev_b32 v3, 5, v0\nv_bfe_u32 v4, v0, 2, 2')
    k('v_and_b32 v5, 1, v0\nv_lshlrev_b32 v5, 1, v5\nv_bfe_u32 v6, v0, 1, 1\nv_or_b32 v5, v5, v6')
    k('s_mul_i32 s60, s3, 8704\nv_add_u32 v20, s60, v1')
    k('v_bfe_u32 v21, v0, 4, 1')
    k('s_lshl_b32 s41, s2, 2\ns_add_u32 s41, s41, s3')
    k.divc(42,43,41,14,44)
    k('v_mul_u32_u24 v6, 896, v2\nv_lshl_add_u32 v6, v3, 4, v6')
    k('s_mul_i32 s44, s42, 28672\ns_lshl_b32 s45, s43, 6\ns_add_u32 s44, s44, s45')
    k('s_mul_i32 s61, s42, 28\ns_lshl_b32 s45, s43, 1\ns_add_u32 s61, s61, s45\ns_lshl_b32 s61, s61, 10')
    k(f's_add_u32 s61, s61, {XA}')
    k(f's_mul_i32 s62, s42, 3584\ns_lshl_b32 s46, s43, 3\ns_add_u32 s62, s62, s46\ns_add_u32 s62, s62, {STA}')
    k('v_mul_u32_u24 v7, 112, v2\nv_lshl_add_u32 v7, v3, 2, v7')
    k(f's_cmp_lt_u32 s41, 896\ns_cselect_b32 s63, 0, 0x70000000\ns_add_u32 s61, s61, s63\ns_add_u32 s62, s62, s63')
    k.ws_srd()
    k.srd(28,12,2048*896)
    k(f's_lshl_b32 s47, s2, 7\ns_add_u32 s47, s47, {FLG}\nv_mov_b32 v16, 0\nv_lshlrev_b32 v17, 2, v2\nbuffer_store_dword v16, v17, s[8:11], s47 offen')
    k.ld4(8,6,28,'s44',0,'x'); k.ld4(12,6,28,'s44',32,'x')
    k('s_cmp_lt_u32 s2, 112\ns_cbranch_scc1 prep_gu\ns_cmp_lt_u32 s2, 160\ns_cbranch_scc1 prep_qkv\ns_cmp_ge_u32 s2, 216\ns_cbranch_scc1 prep_wo')
    R=24; P=64
    def body(nld,ldf,nks,rdf):
        k.vm=['x','x']
        for q in range(nld): ldf(q)
        k.wvm('x')
        k.st4(8,1,8,'s61',0); k.st4(12,1,8,'s61',1024)
        k.st_stats(8,16,40,7,'s62')
        for q in range(nld):
            k.wvm(f'w{q}'); k(f'ds_write_b128 v20, v[{R+4*q}:{R+4*q+3}] offset:{rdf(q,None)}')
        k('s_waitcnt lgkmcnt(0)')
        for q in range(nks):
            for e in range(2): k(f'ds_read_b64_tr_b16 v[{P+4*q+2*e}:{P+4*q+2*e+1}], v22 offset:{rdf(q,e)}')
        k('s_waitcnt lgkmcnt(0)')
    def plain(nks,steps,stride):
        def ldf(q):
            k.ld4(R+4*q,6,32,'s50',0,f'w{q}'); k(f's_add_u32 s50, s50, {steps[q]*stride}')
        body(nks,ldf,nks,lambda q,e: 1024*q+(256*e if e is not None else 0))
    def rdaddr64(fix):
        k('v_lshl_add_u32 v22, v3, 3, v4\nv_lshlrev_b32 v22, 6, v22\nv_lshl_add_u32 v23, v21, 2, v5')
        if fix: k('v_cmp_eq_u32 vcc, 6, v23\nv_cndmask_b32 v23, v23, 7, vcc')
        k('v_lshl_add_u32 v22, v23, 3, v22\nv_add_u32 v22, s60, v22')
    def stores(nks,step):
        for q in range(nks):
            k(f'buffer_store_dwordx4 v[{P+4*q}:{P+4*q+3}], v1, s[8:11], s52 offen')
            k(f's_add_u32 s52, s52, {step}')
    def colsum():
        CS=4*8704
        k('v_mov_b32 v16, 0\nv_mov_b32 v17, 0')
        for i in range(28): k(f'v_dot2_f32_bf16 v{16+(i&1)}, v{P+i}, s40, v{16+(i&1)}')
        k(f's_lshl_b32 s54, s3, 8\ns_add_u32 s54, s54, {CS}\nv_lshl_add_u32 v18, v0, 2, s54\ns_nop 2\nv_add_f32 v16, v16, v17\nds_write_b32 v18, v16\ns_waitcnt lgkmcnt(0)\ns_barrier')
        k('v_lshlrev_b32 v17, 2, v2')
        for i in range(8): k(f'ds_read_b32 v{R+i}, v17 offset:{CS+128*i}')
        k('v_and_b32 v18, 3, v2\nv_lshrrev_b32 v19, 3, v2\nv_lshl_add_u32 v18, v19, 2, v18\nv_bfe_u32 v19, v2, 2, 1\nv_lshl_add_u32 v18, v19, 4, v18')
        k(f'v_cndmask_b32 v18, v2, v18, s[56:57]\nv_lshlrev_b32 v18, 2, v18')
        k('s_waitcnt lgkmcnt(0)')
        for i in range(1,8): k(f'v_add_f32 v{R}, v{R}, v{R+i}')
        k(f'buffer_store_dword v{R}, v18, s[8:11], s53 offen')
    k.srd(32,24,1792*896)
    k('s_sub_u32 s41, s2, 160\ns_and_b32 s42, s41, 7\ns_mul_i32 s42, s42, 7\ns_lshr_b32 s41, s41, 3\ns_add_u32 s41, s41, s42')
    k.divc(43,42,41,14,44)
    k('s_mul_i32 s44, s43, 28\ns_mul_i32 s45, s3, 7\ns_add_u32 s44, s44, s45')
    k('s_mul_i32 s50, s44, 14336\ns_lshl_b32 s45, s42, 6\ns_add_u32 s50, s50, s45')
    k('v_lshrrev_b32 v6, 2, v0\nv_mul_u32_u24 v6, 896, v6\nv_and_b32 v23, 3, v0\nv_lshl_add_u32 v6, v23, 4, v6')
    k(f's_mul_i32 s52, s42, 112\ns_add_u32 s52, s52, s44\ns_lshl_b32 s52, s52, 10\ns_add_u32 s52, s52, {WD}')
    rdaddr64(False); plain(7,[16]*7,896); stores(7,1024)
    k.tsflush(); k('s_endpgm')
    k('prep_wo:'); k.srd(32,16,448*896)
    k('s_sub_u32 s42, s2, 216')
    k('s_mul_i32 s50, s3, 100352\ns_lshl_b32 s45, s42, 6\ns_add_u32 s50, s50, s45')
    k('v_lshrrev_b32 v6, 2, v0\nv_mul_u32_u24 v6, 896, v6\nv_and_b32 v23, 3, v0\nv_lshl_add_u32 v6, v23, 4, v6')
    k(f's_lshl_b32 s52, s42, 5\ns_lshl_b32 s44, s3, 3\ns_add_u32 s52, s52, s44\ns_lshl_b32 s52, s52, 10\ns_add_u32 s52, s52, {WO}')
    rdaddr64(False); plain(8,[16,12]*4,896)
    k('s_mov_b32 s56, -1\ns_mov_b32 s57, 0')
    for q in (1,3,5,7):
        for j in (2,3): k(f'v_cndmask_b32 v{P+4*q+j}, 0, v{P+4*q+j}, s[56:57]')
    stores(8,1024)
    k.tsflush(); k('s_endpgm')
    k('prep_gu:'); k.srd(32,20,448*3584); k.srd(36,22,448*3584)
    k('s_and_b32 s41, s2, 7\ns_mul_i32 s41, s41, 14\ns_lshr_b32 s42, s2, 3\ns_add_u32 s41, s41, s42'); k.divc(42,43,41,7,44)
    k('s_mul_i32 s50, s3, 401408\ns_lshl_b32 s45, s41, 5\ns_add_u32 s50, s50, s45')
    k('v_lshrrev_b32 v6, 1, v0\nv_mul_u32_u24 v6, 3584, v6\nv_and_b32 v23, 1, v0\nv_lshl_add_u32 v6, v23, 4, v6')
    k(f's_lshl_b32 s53, s41, 7\ns_add_u32 s53, s53, {CSG}\ns_mov_b64 s[56:57], -1')
    k(f's_mul_i32 s52, s42, 200704\ns_add_u32 s52, s52, {WG}')
    k('s_mul_i32 s44, s3, 21\ns_add_u32 s44, s44, s43\ns_movk_i32 s55, 3072')
    k('s_mul_i32 s45, s43, 28\ns_mul_i32 s46, s3, 7\ns_add_u32 s45, s45, s46')
    k('s_cmp_lt_u32 s43, 3\ns_cselect_b32 s44, s44, s45\ns_cselect_b32 s55, s55, 1024\ns_lshl_b32 s44, s44, 10\ns_add_u32 s52, s52, s44')
    k('v_lshl_add_u32 v22, v3, 3, v4\nv_lshlrev_b32 v22, 5, v22\nv_lshl_add_u32 v22, v5, 3, v22\nv_mul_u32_u24 v23, 4224, v21\nv_add3_u32 v22, v22, v23, s60')
    def ldf(q):
        k.ld4(R+4*q,6,32 if q%2==0 else 36,'s50',0,f'w{q}')
        if q%2: k(f's_add_u32 s50, s50, {32*3584}')
    body(8,ldf,7,lambda q,e: (1024*(q//2)+4224*(q&1)) if e is None else 512*q+128*e)
    stores(7,'s55'); colsum()
    k.tsflush(); k('s_endpgm')
    k('prep_qkv:'); k.srd(32,14,448*2688)
    k('s_sub_u32 s41, s2, 112\ns_and_b32 s42, s41, 7\ns_lshl_b32 s42, s42, 1\ns_bfe_u32 s43, s41, 0x10003\ns_add_u32 s42, s42, s43\ns_lshr_b32 s43, s41, 4')
    k('s_mul_i32 s50, s3, 301056\ns_mul_i32 s45, s43, 896\ns_add_u32 s50, s50, s45\ns_mul_i32 s45, s42, 56\ns_add_u32 s50, s50, s45')
    k('v_lshrrev_b32 v6, 2, v0\nv_mul_u32_u24 v6, 2688, v6\nv_and_b32 v23, 3, v0\nv_lshlrev_b32 v23, 4, v23\nv_min_u32 v23, 40, v23\nv_add_u32 v6, v6, v23')
    k(f's_mul_i32 s53, s42, 3\ns_add_u32 s53, s53, s43\ns_lshl_b32 s53, s53, 7\ns_add_u32 s53, s53, {CSQ}\ns_cmp_lt_u32 s43, 2\ns_cselect_b64 s[56:57], -1, 0')
    k(f's_mul_i32 s52, s42, 84\ns_mul_i32 s44, s3, 21\ns_add_u32 s52, s52, s44\ns_add_u32 s52, s52, s43\ns_lshl_b32 s52, s52, 10\ns_add_u32 s52, s52, {WQ}')
    rdaddr64(True); plain(7,[16]*7,2688)
    k('s_mov_b32 s58, 0x0fffffff\ns_mov_b32 s59, 0x0fffffff')
    for i in range(28): k(f'v_cndmask_b32 v{P+i}, 0, v{P+i}, s[58:59]')
    stores(7,3072); colsum()
    k.tsflush(); k.end()
    return k
```

```python
XA=0x0000000; XB=0x0200000; WQ=0x0400000; WO=0x0600000; WG=0x0700000; WD=0x0B00000
QF=0x0D00000; KV=0x0F00000; OF=0x1300000; HF=0x1500000
LOFF=0x2000000; FLG=0x1CA0000
CSQ=0x1C00000; CSG=0x1C10000; STA=0x1C20000; STB=0x1C60000; WSEND=0x3D00000
ONES=0x3F803F80
import os
TS=int(os.environ.get('TS','0'))
def rg(r,n):
    return f'a[{r-1000}:{r-1000+n-1}]' if r>=1000 else f'v[{r}:{r+n-1}]'
class K:
    def __init__(s,name,nwg,block,lds,vgpr=256,sgpr=96,agpr=0):
        s.name=name; s.nwg=nwg; s.block=block; s.lds=lds; s.vgpr=vgpr; s.agpr=agpr; s.sgpr=sgpr
        s.L=[]; s.vm=[]; s.lg=[]; s.sc=''; s.tson=True; s.nlab=0
        s(f'.globl {name}\n.p2align 8\n.type {name},@function\n{name}:')
    def __call__(s,t): s.L.append(t)
    def vmop(s,t,tag): s(t); s.vm.append(tag)
    def wvm(s,tag):
        idx=[i for i,x in enumerate(s.vm) if x==tag]
        if not idx: return
        n=len(s.vm)-1-idx[-1]
        assert n<=63,(s.name,tag,n)
        s(f's_waitcnt vmcnt({n})'); s.vm=s.vm[idx[-1]+1:]
    def wvm0(s): s('s_waitcnt vmcnt(0)'); s.vm=[]
    def lgop(s,t,tag): s(t); s.lg.append(tag)
    def wlg(s,tag):
        idx=[i for i,x in enumerate(s.lg) if x==tag]
        if not idx: return
        n=len(s.lg)-1-idx[-1]
        assert n<=15,(s.name,tag,n)
        s(f's_waitcnt lgkmcnt({n})'); s.lg=s.lg[idx[-1]+1:]
    def wlg0(s): s('s_waitcnt lgkmcnt(0)'); s.lg=[]
    def nop(s,n):
        while n>0:
            m=min(n,16); s(f's_nop {m-1}'); n-=m
    def mfma(s,d,a,b,c=None):
        s(f'v_mfma_f32_32x32x16_bf16 v[{d}:{d+15}], {rg(a,4)}, {rg(b,4)}, '+(f'v[{d}:{d+15}]' if c is None else c))
    def srd(s,d,b,n):
        s(f's_mov_b32 s{d}, s{b}\ns_mov_b32 s{d+1}, s{b+1}\ns_mov_b32 s{d+2}, {n}\ns_mov_b32 s{d+3}, 0x00020000')
    def ld4(s,v,voff,srd,soff,imm,tag):
        s.vmop(f'buffer_load_dwordx4 {rg(v,4)}, v{voff}, s[{srd}:{srd+3}], {soff} offen offset:{imm}'+s.sc,tag)
    def st4(s,v,voff,srd,soff,imm,tag='st'):
        s.vmop(f'buffer_store_dwordx4 v[{v}:{v+3}], v{voff}, s[{srd}:{srd+3}], {soff} offen offset:{imm}'+s.sc,tag)
    def dma(s,voff,srd,soff,imm,tag):
        s.vmop(f'buffer_load_dwordx4 v{voff}, s[{srd}:{srd+3}], {soff} offen offset:{imm} lds',tag)
    def dsr(s,v,addr,off,tag):
        assert 0<=off<65536
        s.lgop(f'ds_read_b128 v[{v}:{v+3}], v{addr} offset:{off}',tag)
    def dsw(s,addr,v,off,tag='w'):
        assert 0<=off<65536
        s.lgop(f'ds_write_b128 v{addr}, v[{v}:{v+3}] offset:{off}',tag)
    def divc(s,q,r,x,c,tmp):
        m=(1<<32)//c+1
        s(f's_mul_hi_u32 s{q}, s{x}, {m}\ns_mul_i32 s{tmp}, s{q}, {c}\ns_sub_u32 s{r}, s{x}, s{tmp}')
    def prologue(s):
        s(f's_cmp_ge_u32 s2, {s.nwg}\ns_cbranch_scc1 {s.name}_end')
        if TS: s('s_memrealtime s[88:89]')
        s.ts(0)
        s('s_load_dwordx2 s[4:5], s[0:1], 72')
        s('v_lshrrev_b32 v2, 6, v0\nv_and_b32 v0, 63, v0\nv_lshlrev_b32 v1, 4, v0\nv_readfirstlane_b32 s3, v2')
    def ws_srd(s):
        s('s_waitcnt lgkmcnt(0)'); s.srd(8,4,WSEND)
    def ts(s,i):
        if TS and s.tson: s(f's_memtime s[{64+2*i}:{65+2*i}]'); s.nts=max(getattr(s,'nts',0),i+1)
    def tsflush(s):
        if not TS: return
        s.tsn=getattr(s,'tsn',0)+1; L=f'{s.name}_ts{s.tsn}'
        s(f's_cmp_lg_u32 s3, 0\ns_cbranch_scc1 {L}')
        s('s_load_dwordx2 s[92:93], s[0:1], 64\ns_waitcnt vmcnt(0)\ns_memrealtime s[90:91]\ns_waitcnt lgkmcnt(0)\ns_mov_b64 exec, 1\nv_mov_b32 v120, 0\nv_mov_b32 v121, s90\nglobal_atomic_umax v120, v121, s[92:93] offset:240')
        s('v_mov_b32 v121, s88\nglobal_atomic_umax v120, v121, s[92:93] offset:244\ns_sub_u32 s94, 0, s88\nv_mov_b32 v121, s94\nglobal_atomic_umax v120, v121, s[92:93] offset:248\ns_sub_u32 s94, 0, s90\nv_mov_b32 v121, s94\nglobal_atomic_umax v120, v121, s[92:93] offset:236')
        n=s.nts
        s(f's_and_b32 s94, s2, 127\ns_cmp_lg_u32 s94, 0\ns_cbranch_scc1 {L}\ns_cmp_lg_u32 s3, 0\ns_cbranch_scc1 {L}\ns_waitcnt lgkmcnt(0)')
        s('s_lshr_b32 s94, s2, 6\ns_lshl_b32 s94, s94, 6\nv_mov_b32 v120, s94')
        for i in range(n): s(f's_sub_u32 s95, s{64+2*i}, s64\nv_mov_b32 v121, s95\nglobal_store_dword v120, v121, s[92:93] offset:{4*i}')
        s(f's_sub_u32 s95, s90, s88\nv_mov_b32 v121, s95\nglobal_store_dword v120, v121, s[92:93] offset:60')
        s(f'{L}:')
    def signal(s,sreg,keep=0):
        s.nlab+=1; L=f'{s.name}_sg{s.nlab}'
        s(f's_waitcnt vmcnt({keep})\ns_barrier\ns_cmp_lg_u32 s3, 0\ns_cbranch_scc1 {L}')
        s(f'v_mov_b32 v4, 1\nv_mov_b32 v5, 0\ns_mov_b64 exec, 1\nbuffer_atomic_add v4, v5, s[8:11], s{sreg} offen sc1\ns_mov_b64 exec, -1\n{L}:')
    def wait(s,sreg,n):
        s.nlab+=1; L=f'{s.name}_wt{s.nlab}'
        s(f's_cmp_lg_u32 s3, 0\ns_cbranch_scc1 {L}x')
        s(f's_mov_b32 s60, 0\nv_mov_b32 v5, 0\n{L}:\nbuffer_load_dword v4, v5, s[8:11], s{sreg} offen sc1\ns_add_u32 s60, s60, 1\ns_waitcnt vmcnt(0)\nv_readfirstlane_b32 s61, v4')
        s(f's_cmp_ge_u32 s61, {n}\ns_cbranch_scc1 {L}x\ns_cmp_gt_u32 s60, 40000\ns_cbranch_scc1 {s.name}_end\ns_sleep 1\ns_branch {L}\n{L}x:\ns_waitcnt vmcnt(0)\ns_barrier')
        s.vm=[]
    def end(s):
        s(f'{s.name}_end:\ns_endpgm')
        s.L+=getattr(s,'tail',[])
    def text(s): return '\n'.join(s.L)
    def kd(s):
        return (f'.p2align 6\n.amdhsa_kernel {s.name}\n  .amdhsa_next_free_vgpr {s.vgpr+s.agpr}\n  .amdhsa_next_free_sgpr {s.sgpr}\n'
                f'  .amdhsa_accum_offset {s.vgpr}\n  .amdhsa_group_segment_fixed_size 0\n  .amdhsa_kernarg_size 80\n'
                '  .amdhsa_user_sgpr_count 2\n  .amdhsa_user_sgpr_kernarg_segment_ptr 1\n  .amdhsa_system_sgpr_workgroup_id_x 1\n.end_amdhsa_kernel')
    def launch(s): return f'; @launch kernel={s.name} grid=({s.nwg},1,1) block=({s.block},1,1) lds={s.lds}'
    def ld_stats(s,b,vtmp,sbase,tag):
        s(f'v_and_b32 v{vtmp}, 31, v0\nv_mul_u32_u24 v{vtmp}, 112, v{vtmp}\nv_lshrrev_b32 v{vtmp+1}, 5, v0\nv_mul_u32_u24 v{vtmp+1}, 56, v{vtmp+1}\nv_add_u32 v{vtmp}, v{vtmp}, v{vtmp+1}')
        for i in range(3): s.ld4(b+4*i,vtmp,8,sbase,16*i,tag)
        s.vmop(f'buffer_load_dwordx2 v[{b+12}:{b+13}], v{vtmp}, s[8:11], {sbase} offen offset:48'+s.sc,tag)
    def fin_stats(s,b,vm,vr):
        for i in range(1,7):
            s(f'v_add_f32 v{b}, v{b}, v{b+2*i}\nv_add_f32 v{b+1}, v{b+1}, v{b+2*i+1}')
        s(f'v_mov_b32 v{b+2}, v{b}\nv_mov_b32 v{b+3}, v{b+1}\ns_nop 1')
        s(f'v_permlane32_swap_b32 v{b}, v{b+2}\nv_permlane32_swap_b32 v{b+1}, v{b+3}\ns_nop 1')
        s(f'v_add_f32 v{b}, v{b}, v{b+2}\nv_add_f32 v{b+1}, v{b+1}, v{b+3}')
        import struct
        inv=struct.unpack('<I',struct.pack('<f',1.0/448))[0]; eps=struct.unpack('<I',struct.pack('<f',1e-5))[0]
        s(f'v_mul_f32 v{vm}, 0x{inv:x}, v{b}\nv_mul_f32 v{b+1}, 0x{inv:x}, v{b+1}')
        s(f'v_fma_f32 v{b+1}, -v{vm}, v{vm}, v{b+1}\nv_max_f32 v{b+1}, 0, v{b+1}\nv_add_f32 v{b+1}, 0x{eps:x}, v{b+1}\nv_rsq_f32 v{vr}, v{b+1}\ns_nop 0')
    def st_stats(s,p,t,sone,voff,soff):
        s(f'v_mov_b32 v{t}, 0\nv_mov_b32 v{t+1}, 0')
        for i in range(8):
            s(f'v_dot2_f32_bf16 v{t}, v{p+i}, s{sone}, v{t}')
            s(f'v_dot2_f32_bf16 v{t+1}, v{p+i}, v{p+i}, v{t+1}')
        s('s_nop 3')
        s(f'v_permlane32_swap_b32 v{t}, v{t+1}\ns_nop 1\nv_add_f32 v{t}, v{t}, v{t+1}')
        s.vmop(f'buffer_store_dword v{t}, v{voff}, s[8:11], {soff} offen'+s.sc,'st')
def f2u(x):
    import struct
    return struct.unpack('<I',struct.pack('<f',x))[0]
```

```python
from core import *
import math
from kad import cs_ops, glu_ops, emit_op, lds_rd
X0=1000; ACC=16; HI=114688
TSL=int(os.environ.get('TSL','1'))
def flag(kind,l,sgrp,dst): return f's_lshl_b32 s{dst}, s{sgrp}, 7\ns_add_u32 s{dst}, s{dst}, {FLG+((l*5+kind)*16)*128}'
def roles(k):
    k('s_and_b32 s40, s2, 3\ns_lshl_b32 s40, s40, 2\ns_bfe_u32 s13, s2, 0x20003\ns_add_u32 s40, s40, s13\ns_lshl_b32 s40, s40, 2\ns_add_u32 s40, s40, s3')
    k('s_bfe_u32 s41, s2, 0x10002\ns_lshl_b32 s41, s41, 3\ns_lshr_b32 s14, s2, 5\ns_add_u32 s41, s41, s14')
    k('s_mul_i32 s50, s3, 3072')
    k(f's_mul_i32 s51, s41, 86016\ns_add_u32 s51, s51, s50\ns_add_u32 s51, s51, {WQ}')
def roles2(k):
    k('s_and_b32 s42, s2, 7\ns_lshl_b32 s42, s42, 1\ns_bfe_u32 s13, s2, 0x10003\ns_add_u32 s42, s42, s13\ns_lshr_b32 s43, s2, 4')
    k('s_and_b32 s12, s2, 7\ns_lshr_b32 s13, s2, 3'); k.divc(14,15,13,7,16)
    k('s_lshl_b32 s12, s12, 2\ns_add_u32 s12, s12, s14\ns_lshr_b32 s16, s3, 1\ns_and_b32 s17, s3, 1')
    k('s_lshl_b32 s12, s12, 1\ns_add_u32 s44, s12, s16\ns_xor_b32 s45, s44, 1')
    k('s_lshl_b32 s15, s15, 1\ns_add_u32 s46, s15, s17\ns_xor_b32 s47, s46, 1')
    k('s_and_b32 s48, s2, 1\ns_lshl_b32 s48, s48, 3\ns_bfe_u32 s13, s2, 0x30003\ns_add_u32 s48, s48, s13\ns_lshl_b32 s48, s48, 2\ns_add_u32 s48, s48, s3')
    k('s_bfe_u32 s49, s2, 0x20001\ns_lshl_b32 s49, s49, 2\ns_lshr_b32 s14, s2, 6\ns_add_u32 s49, s49, s14')
    k(f's_mul_i32 s52, s49, 200704\ns_add_u32 s52, s52, {WG}\ns_mul_i32 s53, s3, 7168\ns_add_u32 s54, s52, s53\ns_add_u32 s52, s52, s50')
    for d,sr,KS,b in ((55,46,32,WO),(56,47,32,WO),(57,46,112,WD),(58,47,112,WD)):
        k(f's_mul_i32 s{d}, s{sr}, {KS*1024}\ns_mul_i32 s13, s3, {KS*256}\ns_add_u32 s{d}, s{d}, s13\ns_add_u32 s{d}, s{d}, {b}')
def wchunk(k,base,c,i,tag):
    if i==0: k(f's_add_u32 s24, s50, {c*12288}\ns_mov_b32 m0, s24\ns_add_u32 s25, s{base}, {c*12288}')
    k.dma(1,8,'s25',1024*i,tag)
SLOT={3:86016,4:114688,5:0,6:28672}
def wtile(k,t,i):
    if i%4==0: k(f's_add_u32 s24, s53, {SLOT[t]+1024*i}\ns_mov_b32 m0, s24\ns_add_u32 s25, s54, {t*28672+1024*i}')
    k.dma(1,8,'s25',1024*(i&3),f't{t}')
def wreg(k,base,areg,q,j,tag):
    sc=k.sc; k.sc=''
    k(f's_add_u32 s26, s{base+j}, {4096*(q>>2)}'); k.ld4(1000+areg,1,8,'s26',1024*(q&3),tag); k.sc=sc
def wd_reg(q,j): return (112+8*q+4*j) if q<18 else 8*(q-18)+4*j
def xops(k,c):
    def x(i):
        def f():
            if i==0: k(f's_add_u32 s26, s21, {c*4096}')
            k.ld4(X0+16*c+4*i,1,8,'s26',1024*i,f'c{c}')
        return f
    return [x(i) for i in range(4)]
def phase1(k,WB,swapv,chunk,PD,bar,later,tail):
    for c in range(PD):
        for o in chunk(c): o()
    def rd(ks):
        if ks%4==0 and (bar or ks==0):
            if bar: k.wvm(f'c{ks//4}')
            k('s_barrier')
        for p in range(3): lds_rd(k,WB+12*(ks%3)+4*p,(ks*3+p)*1024,f'r{ks}')
    rd(0); rd(1); q=[]
    for ks in range(28):
        if ks%4==0:
            assert not q
            c=ks//4; q=list(chunk(c+PD) if c+PD<7 else [])+list(later.get(c,[])); n=len(q); slot=0
            k.wvm(f'c{c}')
        k.wlg(f'r{ks}')
        for p in range(3):
            w=WB+12*(ks%3)+4*p; x=X0+4*ks
            a,b=(x,w) if (swapv and p==2) else (w,x)
            k.mfma(ACC+16*p,a,b,'0' if ks==0 else None)
            if p==0:
                if ks+2<28: rd(ks+2)
                else: tail(ks)
            slot+=1
            while q and (n-len(q))*11<slot*n: q.pop(0)()
def phA(k,l):
    o=l*LOFF
    WB=64; ST=100; CQ=116; CK=132; RS=148; PK=180
    k(f's_mul_i32 s21, s40, 28672\ns_add_u32 s21, s21, {XA+o}\ns_mul_i32 s27, s40, 3584\ns_add_u32 s27, s27, {STA+o}')
    k(f's_mul_i32 s28, s41, 384\ns_add_u32 s28, s28, {CSQ}')
    k('v_lshrrev_b32 v6, 5, v0\nv_lshlrev_b32 v6, 6, v6\nv_and_b32 v7, 31, v0\nv_lshlrev_b32 v7, 2, v7')
    if l==0:
        k.ws_srd()
        def chunk(c):
            x=xops(k,c); w=[(lambda i=i: wchunk(k,51,c,i,f'c{c}')) for i in range(3)]
            return [x[0],w[0],x[1],w[1],x[2],w[2],x[3]]
        PD=3
    else:
        k('s_lshr_b32 s12, s40, 2'); k(flag(4,0,12,13)); k.wait(13,14); chunk=lambda c: xops(k,c); PD=4
    k.ts(1)
    lat=[lambda: k.ld_stats(ST,4,'s27','e')]
    lat+=[(lambda i=i: k.ld4(CQ+4*i,6,8,'s28',16*(i&3)+128*(i>>2),'e')) for i in range(8)]
    lat+=[lambda: k.vmop('buffer_load_dword v8, v7, s[8:11], s28 offen offset:256','e')]
    phase1(k,WB,True,chunk,PD,l==0,{7-PD:lat},lambda ks:None)
    if l==0: roles2(k)
    k.wvm('e')
    k.fin_stats(ST,9,10)
    k('v_mul_f32 v11, v9, v10')
    k(f's_lshl_b32 s29, s3, 8\ns_add_u32 s29, s29, 86016\nv_lshrrev_b32 v12, 5, v0\nv_lshl_add_u32 v13, v12, 7, v7\nv_add_u32 v13, s29, v13')
    k('s_mov_b32 s30, 0\ns_mov_b32 s31, -1\nv_cndmask_b32 v14, v10, v11, s[30:31]\nds_write_b32 v13, v14')
    k('v_lshl_add_u32 v12, v12, 4, s29\ns_waitcnt lgkmcnt(0)')
    for g in range(4):
        k(f'ds_read_b128 v[{RS+4*g}:{RS+4*g+3}], v12 offset:{32*g}')
        k(f'ds_read_b128 v[{RS+16+4*g}:{RS+19+4*g}], v12 offset:{128+32*g}')
    c=f2u(28**-0.5*math.log2(math.e))
    k(f'v_mul_f32 v12, 0x{c:x}, v10')
    k(f's_lshl_b32 s14, s41, 6\ns_add_u32 s14, s14, s40\ns_lshl_b32 s15, s14, 11\ns_add_u32 s15, s15, {QF+o}\ns_lshl_b32 s16, s14, 12\ns_add_u32 s16, s16, {KV+o}')
    k(f's_mov_b32 s34, 0x{ONES:x}\nv_mov_b32 v15, s34\ns_mov_b32 s32, 0x10000000\ns_mov_b32 s33, 0x10000000')
    for i in range(16): k(f'v_fma_f32 v{ACC+16+i}, -v9, v{CK+i}, v{ACC+16+i}')
    for i in range(16): k(f'v_mul_f32 v{ACC+16+i}, v{ACC+16+i}, v10')
    for i in range(8): k(f'v_cvt_pk_bf16_f32 v{PK+8+i}, v{ACC+16+2*i}, v{ACC+17+2*i}')
    k(f'v_cndmask_b32 v{PK+14}, v{PK+14}, v15, s[30:31]')
    k.st4(PK+8,1,8,'s16',0); k.st4(PK+12,1,8,'s16',1024)
    k('s_waitcnt lgkmcnt(0)')
    for i in range(16): k(f'v_mul_f32 v{ACC+32+i}, v{ACC+32+i}, v{RS+i}')
    for i in range(16): k(f'v_fma_f32 v{ACC+32+i}, -v{RS+16+i}, v8, v{ACC+32+i}')
    for i in range(8): k(f'v_cvt_pk_bf16_f32 v{PK+16+i}, v{ACC+32+2*i}, v{ACC+33+2*i}')
    for i in range(8): k(f'v_cndmask_b32 v{PK+16+i}, v{PK+16+i}, v15, s[32:33]')
    k.st4(PK+16,1,8,'s16',2048); k.st4(PK+20,1,8,'s16',3072)
    for i in range(16): k(f'v_fma_f32 v{ACC+i}, -v9, v{CQ+i}, v{ACC+i}')
    for i in range(16): k(f'v_mul_f32 v{ACC+i}, v{ACC+i}, v12')
    for i in range(8): k(f'v_cvt_pk_bf16_f32 v{PK+i}, v{ACC+2*i}, v{ACC+2*i+1}')
    k.st4(PK,1,8,'s15',0); k.st4(PK+4,1,8,'s15',1024)
    k.ts(2)
    k(flag(0,l,41,13)); k.signal(13,tsd=12)
def phCE(k,l,down):
    o=l*LOFF; last=down and l==1
    src,KS,res,dst,std=(HF+o,112,XB+o,XA+o+LOFF,STA+o+LOFF) if down else (OF+o,32,XA+o,XB+o,STB+o)
    per=KS//4; L=f'{k.name}_ce{l}{int(down)}'
    k(f's_cmp_ge_u32 s2, 224\ns_cbranch_scc1 {L}')
    k(f's_mul_i32 s18, s3, {per*1024}')
    for d,sr in ((20,44),(21,45)): k(f's_mul_i32 s{d}, s{sr}, {KS*1024}\ns_add_u32 s{d}, s{d}, s18\ns_add_u32 s{d}, s{d}, {src}')
    k(f's_mul_i32 s24, s44, 28\ns_lshl_b32 s25, s46, 1\ns_add_u32 s24, s24, s25\ns_lshl_b32 s24, s24, 10\ns_add_u32 s25, s24, {res}')
    k('s_lshr_b32 s12, s44, 2'); k(flag(3 if down else 1,l,12,13)); k.wait(13,16)
    k.ts(9 if down else 5)
    R=80; ND=min(per,14); RES=208
    def ld(q):
        if q and q%4==0: k('s_add_u32 s20, s20, 4096\ns_add_u32 s21, s21, 4096')
        for i in range(2): k.ld4(R+8*(q%ND)+4*i,1,8,f's{20+i}',1024*(q&3),f'k{q}')
    for q in range(min(ND,8)): ld(q)
    nxt=min(ND,8)
    for q in range(per):
        k.wvm(f'k{q}')
        b=R+8*(q%ND)
        for s in range(4):
            w=1000+(wd_reg(q,s&1) if down else 112+8*q+4*(s&1))
            k.mfma(ACC+16*s,w,b+4*(s>>1),'0' if q==0 else None)
            if s in (0,2) and nxt<per and nxt<q+ND and (s==0 or q<ND): ld(nxt); nxt+=1
        if q==per-6: k.ld4(RES,1,8,'s25',0,'res'); k.ld4(RES+4,1,8,'s25',1024,'res')
    for s in range(1,4): k(f's_xor_b32 s26, s3, {s}\ns_mul_i32 s26, s26, 12288\ns_add_u32 s26, s26, {(s-1)*4096+HI}\nv_add_u32 v{11+s}, s26, v1')
    k(f's_mul_i32 s26, s3, 12288\ns_add_u32 s26, s26, {HI}\nv_add_u32 v5, s26, v1')
    for s in range(1,4):
        for g in range(4): k.dsw(11+s,ACC+16*s+4*g,1024*g)
    k('v_and_b32 v6, 31, v0\nv_lshrrev_b32 v7, 5, v0')
    k.wvm('res')
    for i in range(8):
        k(f'v_lshlrev_b32 v8, 16, v{RES+i}\nv_and_b32 v9, 0xffff0000, v{RES+i}\nv_add_f32 v{ACC+2*i}, v{ACC+2*i}, v8\nv_add_f32 v{ACC+2*i+1}, v{ACC+2*i+1}, v9')
    k.wlg0(); k('s_barrier')
    for j in range(12): k.dsr(R+4*j,5,1024*j,f'r{j//4}')
    for j in range(3):
        k.wlg(f'r{j}')
        for i in range(16): k(f'v_add_f32 v{ACC+i}, v{ACC+i}, v{R+16*j+i}')
    for i in range(8): k(f'v_cvt_pk_bf16_f32 v{RES+i}, v{ACC+2*i}, v{ACC+2*i+1}')
    if last:
        k.sc=''
        k('v_mul_u32_u24 v6, 896, v6\nv_lshl_add_u32 v6, v7, 4, v6\ns_mul_i32 s25, s44, 28672\ns_lshl_b32 s26, s46, 6\ns_add_u32 s25, s25, s26')
        k.srd(32,6,2048*896)
        k.st4(RES,6,32,'s25',0); k.st4(RES+4,6,32,'s25',32); k.ts(10)
    else:
        k(f's_add_u32 s25, s24, {dst}')
        k.st4(RES,1,8,'s25',0); k.st4(RES+4,1,8,'s25',1024)
        k(f'v_mul_u32_u24 v6, 112, v6\nv_lshl_add_u32 v6, v7, 2, v6\ns_mul_i32 s25, s44, 3584\ns_lshl_b32 s26, s46, 3\ns_add_u32 s25, s25, s26\ns_add_u32 s25, s25, {std}\ns_mov_b32 s27, 0x{ONES:x}')
        k.st_stats(RES,10,27,6,'s25')
        k.ts(10 if down else 6)
        k(flag(4 if down else 2,l,12,13)); k.signal(13,tsd=16 if down else 14)
    k(f'{L}:'); k.vm=[]
    if down and not last:
        for c in range(7):
            for i in range(3): wchunk(k,51,c,i,'pf')
def phD(k,l):
    o=l*LOFF; CSL=143360
    WB=128; ST=164; CSR=180; PK=212
    for i in range(7): wtile(k,4,i)
    k(f's_mul_i32 s30, s49, 896\ns_add_u32 s30, s30, {CSG}\ns_mov_b32 m0, {CSL}\ns_nop 0'); k.dma(1,8,'s30',0,'e')
    k(f's_mul_i32 s21, s48, 28672\ns_add_u32 s21, s21, {XB+o}\ns_mul_i32 s27, s48, 3584\ns_add_u32 s27, s27, {STB+o}')
    k(f's_mul_i32 s28, s48, 112\ns_mul_i32 s29, s49, 7\ns_add_u32 s28, s28, s29\ns_lshl_b32 s28, s28, 10\ns_add_u32 s28, s28, {HF+o}\ns_add_u32 s29, s28, 4096')
    k(f'v_lshrrev_b32 v13, 5, v0\nv_lshlrev_b32 v13, 6, v13\nv_add_u32 v13, {CSL}, v13')
    k('s_lshr_b32 s12, s48, 2'); k(flag(2,l,12,13)); k.wait(13,14); k.ts(7)
    NB=9; RA=4
    def wb(g): return WB+4*((g+3)%NB)
    def rd(g):
        t=3+g//28; q=g%28
        if q==0 and t!=4: k.wvm(f't{t}'); k('s_barrier')
        lds_rd(k,wb(g),SLOT[t]+q*1024,f'g{g}')
    def tail(ks):
        if ks==27:
            for g in range(4): rd(g)
    pf=[(lambda q=q,j=j: wreg(k,57,wd_reg(q,j),q,j,'pf')) for q in range(28) for j in range(2)]
    phase1(k,WB,False,lambda c: xops(k,c),4,False,{3:[lambda: k.ld_stats(ST,4,'s27','e')],4:pf[0:6],5:pf[6:12],6:pf[12:18]},tail)
    k.wvm('e')
    sv=k.L; k.L=[]
    k.fin_stats(ST,10,9)
    c=f2u(-math.log2(math.e))
    k(f'v_sqrt_f32 v12, v{ST+1}\nv_mul_f32 v11, 0x{c:x}, v9')
    Q=[(0,4,x) for x in '\n'.join(k.L).split('\n')]; k.L=sv
    for e in range(7):
        av=1 if e<3 else 28*(e-2)+2
        if e==0: Q+=[(0,)+x for x in cs_ops(CSR,0)]
        g=glu_ops(ACC+16*e,CSR+16*(e&1),PK+4*(e&1),e)
        nx=cs_ops(CSR+16*((e+1)&1),e+1) if e<6 else []
        Q+=[(av,)+x for x in g[:9]+nx+g[9:]]
    bud=0; BUD=int(os.environ.get('BUD','22')); dm=[]
    for g in range(112):
        t=3+g//28; q=g%28
        if q==0: dm=[(lambda i=i,t=t: wtile(k,t+2,i)) for i in range(7)] if t<5 else pf[18+9*(t-5):27+9*(t-5)]
        k.wlg(f'g{g}')
        k.mfma(ACC+16*t,wb(g),X0+4*q,'0' if q==0 else None)
        if g+RA<112: rd(g+RA)
        if dm and q%3==1 or (dm and q==2 and len(dm)>8):
            dm.pop(0)()
            if t<5: continue
        bud=min(bud+BUD,BUD+4)
        while Q and Q[0][0]<=g and bud>=Q[0][1]:
            x=Q.pop(0); bud-=x[1]; emit_op(k,x[2])
        assert q<27 or not dm
    first=True
    for x in Q:
        if x[0]>111 and first: k.nop(12); first=False
        emit_op(k,x[2])
    k.ts(8)
    k(flag(3,l,12,13)); k.signal(13,tsd=15)
    for f in pf[36:]: f()
def gen_F():
    from kb import attn_body
    k=K('main_kernel',256,256,163840,vgpr=256,agpr=256)
    k.prologue()
    k('s_load_dwordx2 s[6:7], s[0:1], 56')
    k('v_add_u32 v2, 65536, v1\nv_add_u32 v3, 65536, v2')
    roles(k)
    for l in range(2):
        k.tson=(l==TSL);
        if l: k.ts(0)
        k.sc=' sc1'
        dw=[(lambda c=c,i=i: wchunk(k,52,c,i,'pf')) for c in range(7) for i in range(3)]
        cw=[(lambda q=q,j=j: wreg(k,55,112+8*q+4*j,q,j,'pf')) for q in range(8) for j in range(2)]
        t3=[(lambda i=i: wtile(k,3,i)) for i in range(7)]
        phA(k,l); attn_body(k,l,flag,[],dw+cw,t3); phCE(k,l,False); phD(k,l); phCE(k,l,True)
    k.tson=True; k.ts(11); k.tsflush()
    k.end(); return k
```

```python
from core import *
def gen_B(name):
    FL=49152
    k=K(name,256,256,FL+64)
    n=name
    k.prologue()
    NT=16
    k('s_and_b32 s12, s2, 7\ns_lshl_b32 s12, s12, 1\ns_bfe_u32 s13, s2, 0x10003\ns_add_u32 s12, s12, s13\ns_lshr_b32 s13, s2, 4')
    k(f's_lshl_b32 s14, s12, 6\ns_lshl_b32 s15, s13, 2\ns_add_u32 s15, s15, s14\ns_lshl_b32 s15, s15, 11\ns_add_u32 s15, s15, {QF}\ns_add_u32 s16, s15, 4096')
    k(f's_lshl_b32 s17, s3, 4\ns_add_u32 s17, s17, s14\ns_lshl_b32 s17, s17, 12\ns_add_u32 s17, s17, {KV}')
    k('s_mov_b32 s19, 0')
    k.ws_srd()
    Q=16; O=48; S=112; P=144; R=152; ND=6
    def kv1(t,i):
        if i==0: k(f's_add_u32 s18, s17, {4096*t}')
        k.ld4(R+16*(t%ND)+4*i,1,8,'s18',1024*i,f'k{t}' if i<2 else f'v{t}')
    def start(real):
        def q(i):
            if real: k.ld4(Q+4*i,1,8,'s15' if i<4 else 's16',1024*(i&3),f'q{i//2}')
            else: k.vmop('buffer_load_dword v3, v1, s[8:11], s15 offen',f'q{i//2}')
        kv1(0,0); q(0); kv1(0,1); q(1); q(2); q(3); kv1(0,2); kv1(0,3)
        for i in range(4,8): q(i)
    start(True)
    k(f's_branch {n}_go')
    k(f'{n}_again:')
    sv=k.vm; k.vm=[]
    start(False)
    k.vm=sv
    k(f'{n}_go:')
    for i in range(4): kv1(1,i)
    pend=[(t,i) for t in range(2,NT) for i in range(4)]
    units=[(t,q) for t in range(NT) for q in range(4)]; NU=len(units)
    def qk(u,h):
        t,q=units[u]
        if h==0 and q==0: k.wvm(f'k{t}')
        if h==0 and t==0: k.wvm(f'q{q}')
        k.mfma(S+16*(u&1),R+16*(t%ND)+4*h,Q+8*q+4*h,'0' if h==0 else None)
    def pv(u,h):
        t,q=units[u]
        if h==0 and q==0: k.wvm(f'v{t}')
        k.mfma(O+16*q,R+16*(t%ND)+8+4*h,P+4*h,'0' if (t==0 and h==0) else None)
    k.ts(1); qk(0,0); k.ts(2); qk(0,1); k.nop(11)
    for u in range(NU):
        s=S+16*(u&1)
        def eg(g):
            for i in range(4): k(f'v_exp_f32 v{s+4*g+i}, v{s+4*g+i}')
            k(f'v_cvt_pk_bf16_f32 v{P+2*g}, v{s+4*g}, v{s+4*g+1}\nv_cvt_pk_bf16_f32 v{P+2*g+1}, v{s+4*g+2}, v{s+4*g+3}')
        def ld():
            if pend and (pend[0][0]<ND or u>4*(pend[0][0]-ND)+4): kv1(*pend.pop(0))
        if u in (4,8,16,32): k.ts(2+[0,4,8,16,32].index(u))
        if u+1<NU: qk(u+1,0)
        eg(0)
        if u>0: pv(u-1,1)
        eg(1)
        if u+1<NU: qk(u+1,1)
        if u<16: ld()
        eg(2)
        pv(u,0)
        ld()
        eg(3)
    assert not pend
    k.nop(2); pv(NU-1,1); k.ts(7)
    for q in range(4):
        k(f's_sub_u32 s20, s3, {q+1}\ns_and_b32 s20, s20, 3\ns_lshl_b32 s20, s20, 12\ns_add_u32 s20, s20, {12288*q}\nv_add_u32 v{4+q}, s20, v1')
    k('s_mul_i32 s20, s3, 12288\nv_add_u32 v2, s20, v1')
    k(f's_lshl_b32 s28, s3, 2\ns_add_u32 s28, s28, {FL}\nv_mov_b32 v9, s28\nv_mov_b32 v10, {FL}\nv_mov_b32 v8, 0x1f800000')
    k(f's_lshl_b32 s25, s13, 2\ns_add_u32 s25, s25, s3\ns_lshl_b32 s25, s25, 5\ns_lshl_b32 s26, s12, 1\ns_add_u32 s25, s25, s26\ns_lshl_b32 s25, s25, 10\ns_add_u32 s25, s25, {OF}')
    A=S
    for q in range(4):
        if q==3: k.nop(4)
        k(f's_cmp_eq_u32 s3, {q}\ns_cbranch_scc1 {n}_own{q}')
        for g in range(4): k(f'ds_write_b128 v{4+q}, v[{O+16*q+4*g}:{O+16*q+4*g+3}] offset:{1024*g}')
        k(f's_branch {n}_nx{q}\n{n}_own{q}:')
        for i in range(16): k(f'v_mov_b32 v{A+i}, v{O+16*q+i}')
        k(f'{n}_nx{q}:')
    k('s_mov_b64 s[30:31], 0')
    for q in range(4):
        k(f'v_cmp_nge_f32 vcc, 0x5d800000, v{O+16*q+12}\nv_cmp_nge_f32 s[28:29], v{O+16*q+12}, v8\ns_or_b32 s31, s31, vcc_hi\ns_or_b32 s31, s31, s29')
    k('s_cmp_lg_u32 s31, 0\ns_cselect_b32 s27, 1, 0\nv_mov_b32 v8, s27\nds_write_b32 v9, v8\ns_waitcnt lgkmcnt(0)\ns_barrier'); k.ts(8)
    k('ds_read_b128 v[4:7], v10')
    for j in range(12): k(f'ds_read_b128 v[{R+4*j}:{R+4*j+3}], v2 offset:{1024*j}')
    k(f's_cmp_lg_u32 s19, 0\ns_cbranch_scc1 {n}_fin')
    k('s_waitcnt lgkmcnt(12)\nv_or3_b32 v8, v4, v5, v6\nv_or_b32 v8, v8, v7\ns_nop 0\nv_readfirstlane_b32 s27, v8')
    k(f's_cmp_lg_u32 s27, 0\ns_cbranch_scc1 {n}_slow')
    k(f'{n}_fin:')
    for j in range(3):
        k(f's_waitcnt lgkmcnt({8-4*j})')
        for i in range(16): k(f'v_add_f32 v{A+i}, v{A+i}, v{R+16*j+i}')
    k(f'v_mov_b32 v8, v{A+12}\nv_mov_b32 v9, v{A+12}\ns_nop 1\nv_permlane32_swap_b32 v8, v9\ns_nop 1\nv_rcp_f32 v9, v9\ns_nop 0')
    for i in range(16): k(f'v_mul_f32 v{A+i}, v{A+i}, v9')
    for i in range(8): k(f'v_cvt_pk_bf16_f32 v{P+i}, v{A+2*i}, v{A+2*i+1}')
    k.st4(P,1,8,'s25',0); k.st4(P+4,1,8,'s25',1024); k.ts(9); k.tsflush()
    k('s_endpgm')
    k(f'{n}_slow:')
    M=8
    k('s_waitcnt lgkmcnt(0)\ns_barrier')
    for q in range(4): k(f'v_mov_b32 v{M+q}, 0xff800000')
    k(f's_mov_b32 s18, s17\ns_mov_b32 s27, {NT}')
    k(f'{n}_mx:')
    k(f'buffer_load_dwordx4 v[{R}:{R+3}], v1, s[8:11], s18 offen\nbuffer_load_dwordx4 v[{R+4}:{R+7}], v1, s[8:11], s18 offen offset:1024\ns_waitcnt vmcnt(0)')
    for q in range(4):
        k.mfma(S,R,Q+8*q,'0'); k.mfma(S,R+4,Q+8*q+4); k.nop(13)
        for i in range(8): k(f'v_max3_f32 v{M+q}, v{M+q}, v{S+2*i}, v{S+2*i+1}')
        k.nop(2)
    k(f's_add_u32 s18, s18, 4096\ns_sub_u32 s27, s27, 1\ns_cmp_lg_u32 s27, 0\ns_cbranch_scc1 {n}_mx')
    k('s_lshl_b32 s20, s3, 10\nv_lshl_add_u32 v12, v0, 2, s20\nv_and_b32 v13, 31, v0\nv_lshlrev_b32 v13, 2, v13')
    for q in range(4): k(f'ds_write_b32 v12, v{M+q} offset:{256*q}')
    k('s_waitcnt lgkmcnt(0)\ns_barrier\ns_mov_b32 s28, 0\ns_mov_b32 s29, -1')
    for q in range(4):
        for w in range(4):
            for h in range(2): k(f'ds_read_b32 v{S+2*w+h}, v13 offset:{1024*w+256*q+128*h}')
        k('s_waitcnt lgkmcnt(0)')
        for i in range(4): k(f'v_max3_f32 v{M+q}, v{M+q}, v{S+2*i}, v{S+2*i+1}')
        k(f'v_sub_f32 v{M+q}, 0, v{M+q}\nv_cvt_pk_bf16_f32 v14, v{M+q}, v{M+q}\nv_lshlrev_b32 v14, 16, v14\nv_sub_f32 v15, v{M+q}, v14')
        k(f'v_cvt_pk_bf16_f32 v14, v14, v15\nv_cndmask_b32 v{Q+8*q+6}, v{Q+8*q+6}, v14, s[28:29]')
    k(f's_barrier\ns_mov_b32 s19, 1\ns_branch {n}_again')
    k.end(); return k

def attn_body(k,l,flag,pre,mid,post):
    o=l*LOFF; HI=114688; FL=113664; n=f'{k.name}_b{l}'; NT=16
    k(f's_lshl_b32 s14, s42, 6\ns_lshl_b32 s15, s43, 2\ns_add_u32 s15, s15, s14\ns_lshl_b32 s15, s15, 11\ns_add_u32 s15, s15, {QF+o}\ns_add_u32 s16, s15, 4096')
    k(f's_lshl_b32 s17, s3, 4\ns_add_u32 s17, s17, s14\ns_lshl_b32 s17, s17, 12\ns_add_u32 s17, s17, {KV+o}')
    k('s_mov_b32 s19, 0')
    k(flag(0,l,42,13)); k.wait(13,16); k.ts(3)
    Q=16; O=48; S=112; P=144; R=152; ND=6
    def kv1(t,i):
        if i==0: k(f's_add_u32 s18, s17, {4096*t}')
        k.ld4(R+16*(t%ND)+4*i,1,8,'s18',1024*i,f'k{t}' if i<2 else f'v{t}')
    def start(real):
        def q(i):
            if real: k.ld4(Q+4*i,1,8,'s15' if i<4 else 's16',1024*(i&3),f'q{i//2}')
            else: k.vmop('buffer_load_dword v13, v1, s[8:11], s15 offen sc1',f'q{i//2}')
        kv1(0,0); q(0); kv1(0,1); q(1); q(2); q(3); kv1(0,2); kv1(0,3)
        for i in range(4,8): q(i)
    start(True)
    k(f'{n}_go:')
    for i in range(4): kv1(1,i)
    pend=[(t,i) for t in range(2,NT) for i in range(4)]
    units=[(t,q) for t in range(NT) for q in range(4)]; NU=len(units)
    def qk(u,h):
        t,q=units[u]
        if h==0 and q==0: k.wvm(f'k{t}')
        if h==0 and t==0: k.wvm(f'q{q}')
        k.mfma(S+16*(u&1),R+16*(t%ND)+4*h,Q+8*q+4*h,'0' if h==0 else None)
    def pv(u,h):
        t,q=units[u]
        if h==0 and q==0: k.wvm(f'v{t}')
        k.mfma(O+16*q,R+16*(t%ND)+8+4*h,P+4*h,'0' if (t==0 and h==0) else None)
    qk(0,0); qk(0,1); k.nop(11)
    mid=list(mid)
    for u in range(NU):
        s=S+16*(u&1)
        def eg(g):
            for i in range(4): k(f'v_exp_f32 v{s+4*g+i}, v{s+4*g+i}')
            k(f'v_cvt_pk_bf16_f32 v{P+2*g}, v{s+4*g}, v{s+4*g+1}\nv_cvt_pk_bf16_f32 v{P+2*g+1}, v{s+4*g+2}, v{s+4*g+3}')
        def ld():
            if pend and (pend[0][0]<ND or u>4*(pend[0][0]-ND)+4): kv1(*pend.pop(0))
        if u+1<NU: qk(u+1,0)
        eg(0)
        if u>0: pv(u-1,1)
        eg(1)
        if u+1<NU: qk(u+1,1)
        if u<16: ld()
        elif mid: mid.pop(0)()
        eg(2)
        pv(u,0)
        ld()
        eg(3)
    assert not pend and not mid
    k.nop(2); pv(NU-1,1)
    for q in range(4):
        k(f's_sub_u32 s20, s3, {q+1}\ns_and_b32 s20, s20, 3\ns_lshl_b32 s20, s20, 12\ns_add_u32 s20, s20, {12288*q+HI}\nv_add_u32 v{4+q}, s20, v1')
    k(f's_mul_i32 s20, s3, 12288\ns_add_u32 s20, s20, {HI}\nv_add_u32 v12, s20, v1')
    k(f's_lshl_b32 s28, s3, 2\ns_add_u32 s28, s28, {FL}\nv_mov_b32 v9, s28\nv_mov_b32 v10, {FL}\nv_mov_b32 v8, 0x1f800000')
    k(f's_lshl_b32 s25, s43, 2\ns_add_u32 s25, s25, s3\ns_lshl_b32 s25, s25, 5\ns_lshl_b32 s26, s42, 1\ns_add_u32 s25, s25, s26\ns_lshl_b32 s25, s25, 10\ns_add_u32 s25, s25, {OF+o}')
    A=S
    for q in range(4):
        if q==3: k.nop(4)
        k(f's_cmp_eq_u32 s3, {q}\ns_cbranch_scc1 {n}_own{q}')
        for g in range(4): k(f'ds_write_b128 v{4+q}, v[{O+16*q+4*g}:{O+16*q+4*g+3}] offset:{1024*g}')
        k(f's_branch {n}_nx{q}\n{n}_own{q}:')
        for i in range(16): k(f'v_mov_b32 v{A+i}, v{O+16*q+i}')
        k(f'{n}_nx{q}:')
    k('s_mov_b64 s[30:31], 0')
    for q in range(4):
        k(f'v_cmp_nge_f32 vcc, 0x5d800000, v{O+16*q+12}\nv_cmp_nge_f32 s[28:29], v{O+16*q+12}, v8\ns_or_b32 s31, s31, vcc_hi\ns_or_b32 s31, s31, s29')
    k('s_cmp_lg_u32 s31, 0\ns_cselect_b32 s27, 1, 0\nv_mov_b32 v8, s27\nds_write_b32 v9, v8\ns_waitcnt lgkmcnt(0)\ns_barrier')
    k('ds_read_b128 v[4:7], v10')
    for j in range(12): k(f'ds_read_b128 v[{R+4*j}:{R+4*j+3}], v12 offset:{1024*j}')
    k(f's_cmp_lg_u32 s19, 0\ns_cbranch_scc1 {n}_fin')
    k('s_waitcnt lgkmcnt(12)\nv_or3_b32 v8, v4, v5, v6\nv_or_b32 v8, v8, v7\ns_nop 0\nv_readfirstlane_b32 s27, v8')
    k(f's_cmp_lg_u32 s27, 0\ns_cbranch_scc1 {n}_slow')
    k(f'{n}_fin:')
    for j in range(3):
        k(f's_waitcnt lgkmcnt({8-4*j})')
        for i in range(16): k(f'v_add_f32 v{A+i}, v{A+i}, v{R+16*j+i}')
    k(f'v_mov_b32 v8, v{A+12}\nv_mov_b32 v9, v{A+12}\ns_nop 1\nv_permlane32_swap_b32 v8, v9\ns_nop 1\nv_rcp_f32 v9, v9\ns_nop 0')
    for i in range(16): k(f'v_mul_f32 v{A+i}, v{A+i}, v9')
    for i in range(8): k(f'v_cvt_pk_bf16_f32 v{P+i}, v{A+2*i}, v{A+2*i+1}')
    k.st4(P,1,8,'s25',0); k.st4(P+4,1,8,'s25',1024); k.ts(4)
    k(flag(1,l,43,13)); k.signal(13,tsd=13)
    for f in post: f()
    sv=(k.L,k.vm); k.L=[]; k.vm=[]
    k(f'{n}_slow:')
    M=8
    k('s_waitcnt vmcnt(0) lgkmcnt(0)\ns_barrier')
    for q in range(4): k(f'v_mov_b32 v{M+q}, 0xff800000')
    k(f's_mov_b32 s18, s17\ns_mov_b32 s27, {NT}')
    k(f'{n}_mx:')
    k(f'buffer_load_dwordx4 v[{R}:{R+3}], v1, s[8:11], s18 offen sc1\nbuffer_load_dwordx4 v[{R+4}:{R+7}], v1, s[8:11], s18 offen offset:1024 sc1\ns_waitcnt vmcnt(0)')
    for q in range(4):
        k.mfma(S,R,Q+8*q,'0'); k.mfma(S,R+4,Q+8*q+4); k.nop(13)
        for i in range(8): k(f'v_max3_f32 v{M+q}, v{M+q}, v{S+2*i}, v{S+2*i+1}')
        k.nop(2)
    k(f's_add_u32 s18, s18, 4096\ns_sub_u32 s27, s27, 1\ns_cmp_lg_u32 s27, 0\ns_cbranch_scc1 {n}_mx')
    k(f's_lshl_b32 s20, s3, 10\ns_add_u32 s20, s20, {HI}\nv_lshl_add_u32 v12, v0, 2, s20\nv_and_b32 v13, 31, v0\nv_lshlrev_b32 v13, 2, v13\nv_add_u32 v13, {HI}, v13')
    for q in range(4): k(f'ds_write_b32 v12, v{M+q} offset:{256*q}')
    k('s_waitcnt lgkmcnt(0)\ns_barrier\ns_mov_b32 s28, 0\ns_mov_b32 s29, -1')
    for q in range(4):
        for w in range(4):
            for h in range(2): k(f'ds_read_b32 v{S+2*w+h}, v13 offset:{1024*w+256*q+128*h}')
        k('s_waitcnt lgkmcnt(0)')
        for i in range(4): k(f'v_max3_f32 v{M+q}, v{M+q}, v{S+2*i}, v{S+2*i+1}')
        k(f'v_sub_f32 v{M+q}, 0, v{M+q}\nv_cvt_pk_bf16_f32 v14, v{M+q}, v{M+q}\nv_lshlrev_b32 v14, 16, v14\nv_sub_f32 v15, v{M+q}, v14')
        k(f'v_cvt_pk_bf16_f32 v14, v14, v15\nv_cndmask_b32 v{Q+8*q+6}, v{Q+8*q+6}, v14, s[28:29]')
    k(f's_barrier\ns_mov_b32 s19, 1')
    start(False)
    k(f's_branch {n}_go')
    k.tail=getattr(k,'tail',[])+k.L; k.L,k.vm=sv
```

```python
XA=0x0000000; XB=0x0200000; WQ=0x0400000; WO=0x0600000; WG=0x0700000; WD=0x0B00000
QF=0x0D00000; KV=0x0F00000; OF=0x1300000; HF=0x1500000
LOFF=0x2000000; FLG=0x1CA0000
CSQ=0x1C00000; CSG=0x1C10000; STA=0x1C20000; STB=0x1C60000; WSEND=0x3D00000
ONES=0x3F803F80
import os
TS=int(os.environ.get('TS','0'))
def rg(r,n):
    return f'a[{r-1000}:{r-1000+n-1}]' if r>=1000 else f'v[{r}:{r+n-1}]'
class K:
    def __init__(s,name,nwg,block,lds,vgpr=256,sgpr=96,agpr=0):
        s.name=name; s.nwg=nwg; s.block=block; s.lds=lds; s.vgpr=vgpr; s.agpr=agpr; s.sgpr=sgpr
        s.L=[]; s.vm=[]; s.lg=[]; s.sc=''; s.tson=True; s.nlab=0
        s(f'.globl {name}\n.p2align 8\n.type {name},@function\n{name}:')
    def __call__(s,t): s.L.append(t)
    def vmop(s,t,tag): s(t); s.vm.append(tag)
    def wvm(s,tag):
        idx=[i for i,x in enumerate(s.vm) if x==tag]
        if not idx: return
        n=len(s.vm)-1-idx[-1]
        assert n<=63,(s.name,tag,n)
        s(f's_waitcnt vmcnt({n})'); s.vm=s.vm[idx[-1]+1:]
    def wvm0(s): s('s_waitcnt vmcnt(0)'); s.vm=[]
    def lgop(s,t,tag): s(t); s.lg.append(tag)
    def wlg(s,tag):
        idx=[i for i,x in enumerate(s.lg) if x==tag]
        if not idx: return
        n=len(s.lg)-1-idx[-1]
        assert n<=15,(s.name,tag,n)
        s(f's_waitcnt lgkmcnt({n})'); s.lg=s.lg[idx[-1]+1:]
    def wlg0(s): s('s_waitcnt lgkmcnt(0)'); s.lg=[]
    def nop(s,n):
        while n>0:
            m=min(n,16); s(f's_nop {m-1}'); n-=m
    def mfma(s,d,a,b,c=None):
        s(f'v_mfma_f32_32x32x16_bf16 v[{d}:{d+15}], {rg(a,4)}, {rg(b,4)}, '+(f'v[{d}:{d+15}]' if c is None else c))
    def srd(s,d,b,n):
        s(f's_mov_b32 s{d}, s{b}\ns_mov_b32 s{d+1}, s{b+1}\ns_mov_b32 s{d+2}, {n}\ns_mov_b32 s{d+3}, 0x00020000')
    def ld4(s,v,voff,srd,soff,imm,tag):
        s.vmop(f'buffer_load_dwordx4 {rg(v,4)}, v{voff}, s[{srd}:{srd+3}], {soff} offen offset:{imm}'+s.sc,tag)
    def st4(s,v,voff,srd,soff,imm,tag='st'):
        s.vmop(f'buffer_store_dwordx4 v[{v}:{v+3}], v{voff}, s[{srd}:{srd+3}], {soff} offen offset:{imm}'+s.sc,tag)
    def dma(s,voff,srd,soff,imm,tag):
        s.vmop(f'buffer_load_dwordx4 v{voff}, s[{srd}:{srd+3}], {soff} offen offset:{imm} lds',tag)
    def dsr(s,v,addr,off,tag):
        assert 0<=off<65536
        s.lgop(f'ds_read_b128 v[{v}:{v+3}], v{addr} offset:{off}',tag)
    def dsw(s,addr,v,off,tag='w'):
        assert 0<=off<65536
        s.lgop(f'ds_write_b128 v{addr}, v[{v}:{v+3}] offset:{off}',tag)
    def divc(s,q,r,x,c,tmp):
        m=(1<<32)//c+1
        s(f's_mul_hi_u32 s{q}, s{x}, {m}\ns_mul_i32 s{tmp}, s{q}, {c}\ns_sub_u32 s{r}, s{x}, s{tmp}')
    def prologue(s):
        s(f's_cmp_ge_u32 s2, {s.nwg}\ns_cbranch_scc1 {s.name}_end')
        if TS==1 or (TS and s.name!='main_kernel'): s('s_memrealtime s[88:89]')
        s.ts(0)
        s('s_load_dwordx2 s[4:5], s[0:1], 72')
        s('v_lshrrev_b32 v2, 6, v0\nv_and_b32 v0, 63, v0\nv_lshlrev_b32 v1, 4, v0\nv_readfirstlane_b32 s3, v2')
    def ws_srd(s):
        s('s_waitcnt lgkmcnt(0)'); s.srd(8,4,WSEND)
    def ts(s,i):
        if TS==2 and s.name=='main_kernel':
            if s.tson: s(f's_memrealtime s[{62+2*i}:{63+2*i}]')
        elif TS and s.tson and i<12: s(f's_memtime s[{64+2*i}:{65+2*i}]'); s.nts=max(getattr(s,'nts',0),i+1)
    def tsflush(s):
        if not TS: return
        if TS==2 and s.name=='main_kernel':
            s.sgpr=102
            s(f's_cmp_lg_u32 s3, 0\ns_cbranch_scc1 {s.name}_end\ns_waitcnt vmcnt(0) lgkmcnt(0)\ns_mov_b64 exec, 1\ns_lshl_b32 s12, s2, 7\ns_add_u32 s12, s12, 0x3E00000\nv_mov_b32 v120, s12')
            for i in range(20): s(f'v_mov_b32 v121, s{62+2*i}\nglobal_store_dword v120, v121, s[4:5] offset:{4*i}')
            return
        s.tsn=getattr(s,'tsn',0)+1; L=f'{s.name}_ts{s.tsn}'
        s(f's_cmp_lg_u32 s3, 0\ns_cbranch_scc1 {L}')
        s('s_load_dwordx2 s[92:93], s[0:1], 64\ns_waitcnt vmcnt(0)\ns_memrealtime s[90:91]\ns_waitcnt lgkmcnt(0)\ns_mov_b64 exec, 1\nv_mov_b32 v120, 0\nv_mov_b32 v121, s90\nglobal_atomic_umax v120, v121, s[92:93] offset:240')
        s('v_mov_b32 v121, s88\nglobal_atomic_umax v120, v121, s[92:93] offset:244\ns_sub_u32 s94, 0, s88\nv_mov_b32 v121, s94\nglobal_atomic_umax v120, v121, s[92:93] offset:248\ns_sub_u32 s94, 0, s90\nv_mov_b32 v121, s94\nglobal_atomic_umax v120, v121, s[92:93] offset:236')
        n=s.nts
        s(f's_and_b32 s94, s2, 127\ns_cmp_lg_u32 s94, 0\ns_cbranch_scc1 {L}\ns_cmp_lg_u32 s3, 0\ns_cbranch_scc1 {L}\ns_waitcnt lgkmcnt(0)')
        s('s_lshr_b32 s94, s2, 6\ns_lshl_b32 s94, s94, 6\nv_mov_b32 v120, s94')
        for i in range(n): s(f's_sub_u32 s95, s{64+2*i}, s64\nv_mov_b32 v121, s95\nglobal_store_dword v120, v121, s[92:93] offset:{4*i}')
        s(f's_sub_u32 s95, s90, s88\nv_mov_b32 v121, s95\nglobal_store_dword v120, v121, s[92:93] offset:60')
        s(f'{L}:')
    def signal(s,sreg,keep=0,tsd=None):
        s.nlab+=1; L=f'{s.name}_sg{s.nlab}'
        s(f's_waitcnt vmcnt({keep})\ns_barrier')
        if tsd is not None: s.ts(tsd)
        s(f's_cmp_lg_u32 s3, 0\ns_cbranch_scc1 {L}')
        s(f'v_mov_b32 v4, 1\nv_mov_b32 v5, 0\ns_mov_b64 exec, 1\nbuffer_atomic_add v4, v5, s[8:11], s{sreg} offen sc1\ns_mov_b64 exec, -1\n{L}:')
    def wait(s,sreg,n):
        s.nlab+=1; L=f'{s.name}_wt{s.nlab}'
        s(f's_cmp_lg_u32 s3, 0\ns_cbranch_scc1 {L}x')
        s(f's_mov_b32 s60, 0\nv_mov_b32 v5, 0\n{L}:\nbuffer_load_dword v4, v5, s[8:11], s{sreg} offen sc1\ns_add_u32 s60, s60, 1\ns_waitcnt vmcnt(0)\nv_readfirstlane_b32 s61, v4')
        s(f's_cmp_ge_u32 s61, {n}\ns_cbranch_scc1 {L}x\ns_cmp_gt_u32 s60, 40000\ns_cbranch_scc1 {s.name}_end\ns_sleep 1\ns_branch {L}\n{L}x:\ns_waitcnt vmcnt(0)\ns_barrier')
        s.vm=[]
    def end(s):
        s(f'{s.name}_end:\ns_endpgm')
        s.L+=getattr(s,'tail',[])
    def text(s): return '\n'.join(s.L)
    def kd(s):
        return (f'.p2align 6\n.amdhsa_kernel {s.name}\n  .amdhsa_next_free_vgpr {s.vgpr+s.agpr}\n  .amdhsa_next_free_sgpr {s.sgpr}\n'
                f'  .amdhsa_accum_offset {s.vgpr}\n  .amdhsa_group_segment_fixed_size 0\n  .amdhsa_kernarg_size 80\n'
                '  .amdhsa_user_sgpr_count 2\n  .amdhsa_user_sgpr_kernarg_segment_ptr 1\n  .amdhsa_system_sgpr_workgroup_id_x 1\n.end_amdhsa_kernel')
    def launch(s): return f'; @launch kernel={s.name} grid=({s.nwg},1,1) block=({s.block},1,1) lds={s.lds}'
    def ld_stats(s,b,vtmp,sbase,tag):
        s(f'v_and_b32 v{vtmp}, 31, v0\nv_mul_u32_u24 v{vtmp}, 112, v{vtmp}\nv_lshrrev_b32 v{vtmp+1}, 5, v0\nv_mul_u32_u24 v{vtmp+1}, 56, v{vtmp+1}\nv_add_u32 v{vtmp}, v{vtmp}, v{vtmp+1}')
        for i in range(3): s.ld4(b+4*i,vtmp,8,sbase,16*i,tag)
        s.vmop(f'buffer_load_dwordx2 v[{b+12}:{b+13}], v{vtmp}, s[8:11], {sbase} offen offset:48'+s.sc,tag)
    def fin_stats(s,b,vm,vr):
        for i in range(1,7):
            s(f'v_add_f32 v{b}, v{b}, v{b+2*i}\nv_add_f32 v{b+1}, v{b+1}, v{b+2*i+1}')
        s(f'v_mov_b32 v{b+2}, v{b}\nv_mov_b32 v{b+3}, v{b+1}\ns_nop 1')
        s(f'v_permlane32_swap_b32 v{b}, v{b+2}\nv_permlane32_swap_b32 v{b+1}, v{b+3}\ns_nop 1')
        s(f'v_add_f32 v{b}, v{b}, v{b+2}\nv_add_f32 v{b+1}, v{b+1}, v{b+3}')
        import struct
        inv=struct.unpack('<I',struct.pack('<f',1.0/448))[0]; eps=struct.unpack('<I',struct.pack('<f',1e-5))[0]
        s(f'v_mul_f32 v{vm}, 0x{inv:x}, v{b}\nv_mul_f32 v{b+1}, 0x{inv:x}, v{b+1}')
        s(f'v_fma_f32 v{b+1}, -v{vm}, v{vm}, v{b+1}\nv_max_f32 v{b+1}, 0, v{b+1}\nv_add_f32 v{b+1}, 0x{eps:x}, v{b+1}\nv_rsq_f32 v{vr}, v{b+1}\ns_nop 0')
    def st_stats(s,p,t,sone,voff,soff):
        s(f'v_mov_b32 v{t}, 0\nv_mov_b32 v{t+1}, 0')
        for i in range(8):
            s(f'v_dot2_f32_bf16 v{t}, v{p+i}, s{sone}, v{t}')
            s(f'v_dot2_f32_bf16 v{t+1}, v{p+i}, v{p+i}, v{t+1}')
        s('s_nop 3')
        s(f'v_permlane32_swap_b32 v{t}, v{t+1}\ns_nop 1\nv_add_f32 v{t}, v{t}, v{t+1}')
        s.vmop(f'buffer_store_dword v{t}, v{voff}, s[8:11], {soff} offen'+s.sc,'st')
def f2u(x):
    import struct
    return struct.unpack('<I',struct.pack('<f',x))[0]
```

```python
from core import *
def gen_P():
    TCH=int(os.environ.get('TCH','0'))
    k=K('prep_kernel',262 if TCH else 230,256,4*8704+1024,vgpr=128)
    k.prologue()
    k('s_load_dwordx4 s[12:15], s[0:1], 0\ns_load_dwordx2 s[16:17], s[0:1], 16\ns_load_dwordx4 s[20:23], s[0:1], 32\ns_load_dwordx2 s[24:25], s[0:1], 48')
    k(f's_mov_b32 s40, 0x{ONES:x}')
    k('v_and_b32 v2, 31, v0\nv_lshrrev_b32 v3, 5, v0\nv_bfe_u32 v4, v0, 2, 2')
    k('v_and_b32 v5, 1, v0\nv_lshlrev_b32 v5, 1, v5\nv_bfe_u32 v6, v0, 1, 1\nv_or_b32 v5, v5, v6')
    k('s_mul_i32 s60, s3, 8704\nv_add_u32 v20, s60, v1')
    k('v_bfe_u32 v21, v0, 4, 1')
    k('s_lshl_b32 s41, s2, 2\ns_add_u32 s41, s41, s3')
    k.divc(42,43,41,14,44)
    k('v_mul_u32_u24 v6, 896, v2\nv_lshl_add_u32 v6, v3, 4, v6')
    k('s_mul_i32 s44, s42, 28672\ns_lshl_b32 s45, s43, 6\ns_add_u32 s44, s44, s45')
    k('s_mul_i32 s61, s42, 28\ns_lshl_b32 s45, s43, 1\ns_add_u32 s61, s61, s45\ns_lshl_b32 s61, s61, 10')
    k(f's_add_u32 s61, s61, {XA}')
    k(f's_mul_i32 s62, s42, 3584\ns_lshl_b32 s46, s43, 3\ns_add_u32 s62, s62, s46\ns_add_u32 s62, s62, {STA}')
    k('v_mul_u32_u24 v7, 112, v2\nv_lshl_add_u32 v7, v3, 2, v7')
    k(f's_cmp_lt_u32 s41, 896\ns_cselect_b32 s63, 0, 0x70000000\ns_add_u32 s61, s61, s63\ns_add_u32 s62, s62, s63')
    k.ws_srd()
    if TCH: k('s_cmp_ge_u32 s2, 230\ns_cbranch_scc1 prep_touch')
    k.srd(28,12,2048*896)
    k(f's_lshl_b32 s47, s2, 7\ns_add_u32 s47, s47, {FLG}\nv_mov_b32 v16, 0\nv_lshlrev_b32 v17, 2, v2\nbuffer_store_dword v16, v17, s[8:11], s47 offen')
    k.ld4(8,6,28,'s44',0,'x'); k.ld4(12,6,28,'s44',32,'x')
    k('s_cmp_lt_u32 s2, 112\ns_cbranch_scc1 prep_gu\ns_cmp_lt_u32 s2, 160\ns_cbranch_scc1 prep_qkv\ns_cmp_ge_u32 s2, 216\ns_cbranch_scc1 prep_wo')
    R=24; P=64
    def body(nld,ldf,nks,rdf):
        k.vm=['x','x']
        for q in range(nld): ldf(q)
        k.wvm('x')
        k.st4(8,1,8,'s61',0); k.st4(12,1,8,'s61',1024)
        k.st_stats(8,16,40,7,'s62')
        for q in range(nld):
            k.wvm(f'w{q}'); k(f'ds_write_b128 v20, v[{R+4*q}:{R+4*q+3}] offset:{rdf(q,None)}')
        k('s_waitcnt lgkmcnt(0)')
        for q in range(nks):
            for e in range(2): k(f'ds_read_b64_tr_b16 v[{P+4*q+2*e}:{P+4*q+2*e+1}], v22 offset:{rdf(q,e)}')
        k('s_waitcnt lgkmcnt(0)')
    def plain(nks,steps,stride):
        def ldf(q):
            k.ld4(R+4*q,6,32,'s50',0,f'w{q}'); k(f's_add_u32 s50, s50, {steps[q]*stride}')
        body(nks,ldf,nks,lambda q,e: 1024*q+(256*e if e is not None else 0))
    def rdaddr64(fix):
        k('v_lshl_add_u32 v22, v3, 3, v4\nv_lshlrev_b32 v22, 6, v22\nv_lshl_add_u32 v23, v21, 2, v5')
        if fix: k('v_cmp_eq_u32 vcc, 6, v23\nv_cndmask_b32 v23, v23, 7, vcc')
        k('v_lshl_add_u32 v22, v23, 3, v22\nv_add_u32 v22, s60, v22')
    def stores(nks,step):
        for q in range(nks):
            k(f'buffer_store_dwordx4 v[{P+4*q}:{P+4*q+3}], v1, s[8:11], s52 offen')
            k(f's_add_u32 s52, s52, {step}')
    def colsum():
        CS=4*8704
        k('v_mov_b32 v16, 0\nv_mov_b32 v17, 0')
        for i in range(28): k(f'v_dot2_f32_bf16 v{16+(i&1)}, v{P+i}, s40, v{16+(i&1)}')
        k(f's_lshl_b32 s54, s3, 8\ns_add_u32 s54, s54, {CS}\nv_lshl_add_u32 v18, v0, 2, s54\ns_nop 2\nv_add_f32 v16, v16, v17\nds_write_b32 v18, v16\ns_waitcnt lgkmcnt(0)\ns_barrier')
        k('v_lshlrev_b32 v17, 2, v2')
        for i in range(8): k(f'ds_read_b32 v{R+i}, v17 offset:{CS+128*i}')
        k('v_and_b32 v18, 3, v2\nv_lshrrev_b32 v19, 3, v2\nv_lshl_add_u32 v18, v19, 2, v18\nv_bfe_u32 v19, v2, 2, 1\nv_lshl_add_u32 v18, v19, 4, v18')
        k(f'v_cndmask_b32 v18, v2, v18, s[56:57]\nv_lshlrev_b32 v18, 2, v18')
        k('s_waitcnt lgkmcnt(0)')
        for i in range(1,8): k(f'v_add_f32 v{R}, v{R}, v{R+i}')
        k(f'buffer_store_dword v{R}, v18, s[8:11], s53 offen')
    k.srd(32,24,1792*896)
    k('s_sub_u32 s41, s2, 160\ns_and_b32 s42, s41, 7\ns_mul_i32 s42, s42, 7\ns_lshr_b32 s41, s41, 3\ns_add_u32 s41, s41, s42')
    k.divc(43,42,41,14,44)
    k('s_mul_i32 s44, s43, 28\ns_mul_i32 s45, s3, 7\ns_add_u32 s44, s44, s45')
    k('s_mul_i32 s50, s44, 14336\ns_lshl_b32 s45, s42, 6\ns_add_u32 s50, s50, s45')
    k('v_lshrrev_b32 v6, 2, v0\nv_mul_u32_u24 v6, 896, v6\nv_and_b32 v23, 3, v0\nv_lshl_add_u32 v6, v23, 4, v6')
    k(f's_mul_i32 s52, s42, 112\ns_add_u32 s52, s52, s44\ns_lshl_b32 s52, s52, 10\ns_add_u32 s52, s52, {WD}')
    rdaddr64(False); plain(7,[16]*7,896); stores(7,1024)
    k.tsflush(); k('s_endpgm')
    k('prep_wo:'); k.srd(32,16,448*896)
    k('s_sub_u32 s42, s2, 216')
    k('s_mul_i32 s50, s3, 100352\ns_lshl_b32 s45, s42, 6\ns_add_u32 s50, s50, s45')
    k('v_lshrrev_b32 v6, 2, v0\nv_mul_u32_u24 v6, 896, v6\nv_and_b32 v23, 3, v0\nv_lshl_add_u32 v6, v23, 4, v6')
    k(f's_lshl_b32 s52, s42, 5\ns_lshl_b32 s44, s3, 3\ns_add_u32 s52, s52, s44\ns_lshl_b32 s52, s52, 10\ns_add_u32 s52, s52, {WO}')
    rdaddr64(False); plain(8,[16,12]*4,896)
    k('s_mov_b32 s56, -1\ns_mov_b32 s57, 0')
    for q in (1,3,5,7):
        for j in (2,3): k(f'v_cndmask_b32 v{P+4*q+j}, 0, v{P+4*q+j}, s[56:57]')
    stores(8,1024)
    k.tsflush(); k('s_endpgm')
    k('prep_gu:'); k.srd(32,20,448*3584); k.srd(36,22,448*3584)
    k('s_and_b32 s41, s2, 7\ns_mul_i32 s41, s41, 14\ns_lshr_b32 s42, s2, 3\ns_add_u32 s41, s41, s42'); k.divc(42,43,41,7,44)
    k('s_mul_i32 s50, s3, 401408\ns_lshl_b32 s45, s41, 5\ns_add_u32 s50, s50, s45')
    k('v_lshrrev_b32 v6, 1, v0\nv_mul_u32_u24 v6, 3584, v6\nv_and_b32 v23, 1, v0\nv_lshl_add_u32 v6, v23, 4, v6')
    k(f's_lshl_b32 s53, s41, 7\ns_add_u32 s53, s53, {CSG}\ns_mov_b64 s[56:57], -1')
    k(f's_mul_i32 s52, s42, 200704\ns_add_u32 s52, s52, {WG}')
    k('s_mul_i32 s44, s3, 21\ns_add_u32 s44, s44, s43\ns_movk_i32 s55, 3072')
    k('s_mul_i32 s45, s43, 28\ns_mul_i32 s46, s3, 7\ns_add_u32 s45, s45, s46')
    k('s_cmp_lt_u32 s43, 3\ns_cselect_b32 s44, s44, s45\ns_cselect_b32 s55, s55, 1024\ns_lshl_b32 s44, s44, 10\ns_add_u32 s52, s52, s44')
    k('v_lshl_add_u32 v22, v3, 3, v4\nv_lshlrev_b32 v22, 5, v22\nv_lshl_add_u32 v22, v5, 3, v22\nv_mul_u32_u24 v23, 4224, v21\nv_add3_u32 v22, v22, v23, s60')
    def ldf(q):
        k.ld4(R+4*q,6,32 if q%2==0 else 36,'s50',0,f'w{q}')
        if q%2: k(f's_add_u32 s50, s50, {32*3584}')
    body(8,ldf,7,lambda q,e: (1024*(q//2)+4224*(q&1)) if e is None else 512*q+128*e)
    stores(7,'s55'); colsum()
    k.tsflush(); k('s_endpgm')
    k('prep_qkv:'); k.srd(32,14,448*2688)
    k('s_sub_u32 s41, s2, 112\ns_and_b32 s42, s41, 7\ns_lshl_b32 s42, s42, 1\ns_bfe_u32 s43, s41, 0x10003\ns_add_u32 s42, s42, s43\ns_lshr_b32 s43, s41, 4')
    k('s_mul_i32 s50, s3, 301056\ns_mul_i32 s45, s43, 896\ns_add_u32 s50, s50, s45\ns_mul_i32 s45, s42, 56\ns_add_u32 s50, s50, s45')
    k('v_lshrrev_b32 v6, 2, v0\nv_mul_u32_u24 v6, 2688, v6\nv_and_b32 v23, 3, v0\nv_lshlrev_b32 v23, 4, v23\nv_min_u32 v23, 40, v23\nv_add_u32 v6, v6, v23')
    k(f's_mul_i32 s53, s42, 3\ns_add_u32 s53, s53, s43\ns_lshl_b32 s53, s53, 7\ns_add_u32 s53, s53, {CSQ}\ns_cmp_lt_u32 s43, 2\ns_cselect_b64 s[56:57], -1, 0')
    k(f's_mul_i32 s52, s42, 84\ns_mul_i32 s44, s3, 21\ns_add_u32 s52, s52, s44\ns_add_u32 s52, s52, s43\ns_lshl_b32 s52, s52, 10\ns_add_u32 s52, s52, {WQ}')
    rdaddr64(True); plain(7,[16]*7,2688)
    k('s_mov_b32 s58, 0x0fffffff\ns_mov_b32 s59, 0x0fffffff')
    for i in range(28): k(f'v_cndmask_b32 v{P+i}, 0, v{P+i}, s[58:59]')
    stores(7,3072); colsum()
    k.tsflush(); k.end()
    if TCH:
        k('prep_touch:\ns_load_dwordx2 s[6:7], s[0:1], 56\ns_sub_u32 s41, s2, 230\ns_lshr_b32 s41, s41, 3\ns_lshl_b32 s41, s41, 2\ns_add_u32 s41, s41, s3\ns_lshl_b32 s41, s41, 6')
        k('v_add_u32 v18, s41, v0\nv_lshlrev_b32 v18, 16, v18\nbuffer_load_dword v19, v18, s[8:11], 0 offen\ns_waitcnt lgkmcnt(0)')
        k.srd(28,6,2048*896)
        k('buffer_load_dword v20, v18, s[28:31], 0 offen\ns_waitcnt vmcnt(0)\ns_endpgm')
    return k
```

```python
XA=0x0000000; XB=0x0200000; WQ=0x0400000; WO=0x0600000; WG=0x0700000; WD=0x0B00000
QF=0x0D00000; KV=0x0F00000; OF=0x1300000; HF=0x1500000
LOFF=0x2000000; FLG=0x1CA0000
CSQ=0x1C00000; CSG=0x1C10000; STA=0x1C20000; STB=0x1C60000; WSEND=0x3D00000
ONES=0x3F803F80
import os
TS=int(os.environ.get('TS','0'))
def rg(r,n):
    return f'a[{r-1000}:{r-1000+n-1}]' if r>=1000 else f'v[{r}:{r+n-1}]'
class K:
    def __init__(s,name,nwg,block,lds,vgpr=256,sgpr=96,agpr=0):
        s.name=name; s.nwg=nwg; s.block=block; s.lds=lds; s.vgpr=vgpr; s.agpr=agpr; s.sgpr=sgpr
        s.L=[]; s.vm=[]; s.lg=[]; s.sc=''; s.tson=True; s.nlab=0
        s(f'.globl {name}\n.p2align 8\n.type {name},@function\n{name}:')
    def __call__(s,t): s.L.append(t)
    def vmop(s,t,tag): s(t); s.vm.append(tag)
    def wvm(s,tag):
        idx=[i for i,x in enumerate(s.vm) if x==tag]
        if not idx: return
        n=len(s.vm)-1-idx[-1]
        assert n<=63,(s.name,tag,n)
        s(f's_waitcnt vmcnt({n})'); s.vm=s.vm[idx[-1]+1:]
    def wvm0(s): s('s_waitcnt vmcnt(0)'); s.vm=[]
    def lgop(s,t,tag): s(t); s.lg.append(tag)
    def wlg(s,tag):
        idx=[i for i,x in enumerate(s.lg) if x==tag]
        if not idx: return
        n=len(s.lg)-1-idx[-1]
        assert n<=15,(s.name,tag,n)
        s(f's_waitcnt lgkmcnt({n})'); s.lg=s.lg[idx[-1]+1:]
    def wlg0(s): s('s_waitcnt lgkmcnt(0)'); s.lg=[]
    def nop(s,n):
        while n>0:
            m=min(n,16); s(f's_nop {m-1}'); n-=m
    def mfma(s,d,a,b,c=None):
        s(f'v_mfma_f32_32x32x16_bf16 v[{d}:{d+15}], {rg(a,4)}, {rg(b,4)}, '+(f'v[{d}:{d+15}]' if c is None else c))
    def srd(s,d,b,n):
        s(f's_mov_b32 s{d}, s{b}\ns_mov_b32 s{d+1}, s{b+1}\ns_mov_b32 s{d+2}, {n}\ns_mov_b32 s{d+3}, 0x00020000')
    def ld4(s,v,voff,srd,soff,imm,tag):
        s.vmop(f'buffer_load_dwordx4 {rg(v,4)}, v{voff}, s[{srd}:{srd+3}], {soff} offen offset:{imm}'+s.sc,tag)
    def st4(s,v,voff,srd,soff,imm,tag='st'):
        s.vmop(f'buffer_store_dwordx4 v[{v}:{v+3}], v{voff}, s[{srd}:{srd+3}], {soff} offen offset:{imm}'+s.sc,tag)
    def dma(s,voff,srd,soff,imm,tag):
        s.vmop(f'buffer_load_dwordx4 v{voff}, s[{srd}:{srd+3}], {soff} offen offset:{imm} lds',tag)
    def dsr(s,v,addr,off,tag):
        assert 0<=off<65536
        s.lgop(f'ds_read_b128 v[{v}:{v+3}], v{addr} offset:{off}',tag)
    def dsw(s,addr,v,off,tag='w'):
        assert 0<=off<65536
        s.lgop(f'ds_write_b128 v{addr}, v[{v}:{v+3}] offset:{off}',tag)
    def divc(s,q,r,x,c,tmp):
        m=(1<<32)//c+1
        s(f's_mul_hi_u32 s{q}, s{x}, {m}\ns_mul_i32 s{tmp}, s{q}, {c}\ns_sub_u32 s{r}, s{x}, s{tmp}')
    def prologue(s):
        s(f's_cmp_ge_u32 s2, {s.nwg}\ns_cbranch_scc1 {s.name}_end')
        if TS==1: s('s_memrealtime s[88:89]')
        s.ts(0)
        s('s_load_dwordx2 s[4:5], s[0:1], 72')
        s('v_lshrrev_b32 v2, 6, v0\nv_and_b32 v0, 63, v0\nv_lshlrev_b32 v1, 4, v0\nv_readfirstlane_b32 s3, v2')
    def ws_srd(s):
        s('s_waitcnt lgkmcnt(0)'); s.srd(8,4,WSEND)
    def ts(s,i):
        if TS==2:
            if s.tson and (i or s.name=='main_kernel'): s(f's_memrealtime s[{62+2*i}:{63+2*i}]')
        elif TS and s.tson and i<12: s(f's_memtime s[{64+2*i}:{65+2*i}]'); s.nts=max(getattr(s,'nts',0),i+1)
    def tsflush(s):
        if not TS: return
        if TS==2:
            s.sgpr=102; mk=s.name=='main_kernel'
            s(f's_cmp_lg_u32 s3, 0\ns_cbranch_scc1 {s.name}_end\ns_waitcnt vmcnt(0)')
            if not mk: s.ts(6)
            s(f's_waitcnt lgkmcnt(0)\ns_mov_b64 exec, 1\ns_lshl_b32 s12, s2, 7\ns_add_u32 s12, s12, {0x3E00000 if mk else 0x3F00000}\nv_mov_b32 v120, s12')
            for i in range(20): s(f'v_mov_b32 v121, s{62+2*i}\nglobal_store_dword v120, v121, s[4:5] offset:{4*i}')
            return
        s.tsn=getattr(s,'tsn',0)+1; L=f'{s.name}_ts{s.tsn}'
        s(f's_cmp_lg_u32 s3, 0\ns_cbranch_scc1 {L}')
        s('s_load_dwordx2 s[92:93], s[0:1], 64\ns_waitcnt vmcnt(0)\ns_memrealtime s[90:91]\ns_waitcnt lgkmcnt(0)\ns_mov_b64 exec, 1\nv_mov_b32 v120, 0\nv_mov_b32 v121, s90\nglobal_atomic_umax v120, v121, s[92:93] offset:240')
        s('v_mov_b32 v121, s88\nglobal_atomic_umax v120, v121, s[92:93] offset:244\ns_sub_u32 s94, 0, s88\nv_mov_b32 v121, s94\nglobal_atomic_umax v120, v121, s[92:93] offset:248\ns_sub_u32 s94, 0, s90\nv_mov_b32 v121, s94\nglobal_atomic_umax v120, v121, s[92:93] offset:236')
        n=s.nts
        s(f's_and_b32 s94, s2, 127\ns_cmp_lg_u32 s94, 0\ns_cbranch_scc1 {L}\ns_cmp_lg_u32 s3, 0\ns_cbranch_scc1 {L}\ns_waitcnt lgkmcnt(0)')
        s('s_lshr_b32 s94, s2, 6\ns_lshl_b32 s94, s94, 6\nv_mov_b32 v120, s94')
        for i in range(n): s(f's_sub_u32 s95, s{64+2*i}, s64\nv_mov_b32 v121, s95\nglobal_store_dword v120, v121, s[92:93] offset:{4*i}')
        s(f's_sub_u32 s95, s90, s88\nv_mov_b32 v121, s95\nglobal_store_dword v120, v121, s[92:93] offset:60')
        s(f'{L}:')
    def signal(s,sreg,keep=0,tsd=None):
        s.nlab+=1; L=f'{s.name}_sg{s.nlab}'
        s(f's_waitcnt vmcnt({keep})\ns_barrier')
        if tsd is not None: s.ts(tsd)
        s(f's_cmp_lg_u32 s3, 0\ns_cbranch_scc1 {L}')
        s(f'v_mov_b32 v4, 1\nv_mov_b32 v5, 0\ns_mov_b64 exec, 1\nbuffer_atomic_add v4, v5, s[8:11], s{sreg} offen sc1\ns_mov_b64 exec, -1\n{L}:')
    def wait(s,sreg,n):
        s.nlab+=1; L=f'{s.name}_wt{s.nlab}'
        s(f's_cmp_lg_u32 s3, 0\ns_cbranch_scc1 {L}x')
        s(f's_mov_b32 s60, 0\nv_mov_b32 v5, 0\n{L}:\nbuffer_load_dword v4, v5, s[8:11], s{sreg} offen sc1\ns_add_u32 s60, s60, 1\ns_waitcnt vmcnt(0)\nv_readfirstlane_b32 s61, v4')
        s(f's_cmp_ge_u32 s61, {n}\ns_cbranch_scc1 {L}x\ns_cmp_gt_u32 s60, 40000\ns_cbranch_scc1 {s.name}_end\ns_sleep 1\ns_branch {L}\n{L}x:\ns_waitcnt vmcnt(0)\ns_barrier')
        s.vm=[]
    def end(s):
        s(f'{s.name}_end:\ns_endpgm')
        s.L+=getattr(s,'tail',[])
    def text(s): return '\n'.join(s.L)
    def kd(s):
        return (f'.p2align 6\n.amdhsa_kernel {s.name}\n  .amdhsa_next_free_vgpr {s.vgpr+s.agpr}\n  .amdhsa_next_free_sgpr {s.sgpr}\n'
                f'  .amdhsa_accum_offset {s.vgpr}\n  .amdhsa_group_segment_fixed_size 0\n  .amdhsa_kernarg_size 80\n'
                '  .amdhsa_user_sgpr_count 2\n  .amdhsa_user_sgpr_kernarg_segment_ptr 1\n  .amdhsa_system_sgpr_workgroup_id_x 1\n.end_amdhsa_kernel')
    def launch(s): return f'; @launch kernel={s.name} grid=({s.nwg},1,1) block=({s.block},1,1) lds={s.lds}'
    def ld_stats(s,b,vtmp,sbase,tag):
        s(f'v_and_b32 v{vtmp}, 31, v0\nv_lshlrev_b32 v{vtmp}, 3, v{vtmp}\nv_lshrrev_b32 v{vtmp+1}, 5, v0\nv_mul_u32_u24 v{vtmp+1}, 1792, v{vtmp+1}\nv_add_u32 v{vtmp}, v{vtmp}, v{vtmp+1}')
        for i in range(7): s.vmop(f'buffer_load_dwordx2 v[{b+2*i}:{b+2*i+1}], v{vtmp}, s[8:11], {sbase} offen offset:{256*i}'+s.sc,tag)
    def fin_stats(s,b,vm,vr):
        for i in range(1,7):
            s(f'v_add_f32 v{b}, v{b}, v{b+2*i}\nv_add_f32 v{b+1}, v{b+1}, v{b+2*i+1}')
        s(f'v_mov_b32 v{b+2}, v{b}\nv_mov_b32 v{b+3}, v{b+1}\ns_nop 1')
        s(f'v_permlane32_swap_b32 v{b}, v{b+2}\nv_permlane32_swap_b32 v{b+1}, v{b+3}\ns_nop 1')
        s(f'v_add_f32 v{b}, v{b}, v{b+2}\nv_add_f32 v{b+1}, v{b+1}, v{b+3}')
        import struct
        inv=struct.unpack('<I',struct.pack('<f',1.0/448))[0]; eps=struct.unpack('<I',struct.pack('<f',1e-5))[0]
        s(f'v_mul_f32 v{vm}, 0x{inv:x}, v{b}\nv_mul_f32 v{b+1}, 0x{inv:x}, v{b+1}')
        s(f'v_fma_f32 v{b+1}, -v{vm}, v{vm}, v{b+1}\nv_max_f32 v{b+1}, 0, v{b+1}\nv_add_f32 v{b+1}, 0x{eps:x}, v{b+1}\nv_rsq_f32 v{vr}, v{b+1}\ns_nop 0')
    def st_stats(s,p,t,sone,voff,soff):
        s(f'v_mov_b32 v{t}, 0\nv_mov_b32 v{t+1}, 0')
        for i in range(8):
            s(f'v_dot2_f32_bf16 v{t}, v{p+i}, s{sone}, v{t}')
            s(f'v_dot2_f32_bf16 v{t+1}, v{p+i}, v{p+i}, v{t+1}')
        s('s_nop 3')
        s(f'v_permlane32_swap_b32 v{t}, v{t+1}\ns_nop 1\nv_add_f32 v{t}, v{t}, v{t+1}')
        s.vmop(f'buffer_store_dword v{t}, v{voff}, s[8:11], {soff} offen'+s.sc,'st')
def f2u(x):
    import struct
    return struct.unpack('<I',struct.pack('<f',x))[0]
```

```python
from core import *
import math
from kad import cs_ops, glu_ops, emit_op, lds_rd
X0=1000; ACC=16; HI=114688
TSL=int(os.environ.get('TSL','1'))
NA=int(os.environ.get('NA','4'))
def flag(kind,l,sgrp,dst): return f's_lshl_b32 s{dst}, s{sgrp}, 7\ns_add_u32 s{dst}, s{dst}, {FLG+((l*5+kind)*16)*128}'
def roles(k):
    k('s_and_b32 s40, s2, 3\ns_lshl_b32 s40, s40, 2\ns_bfe_u32 s13, s2, 0x20003\ns_add_u32 s40, s40, s13\ns_lshl_b32 s40, s40, 2\ns_add_u32 s40, s40, s3')
    k('s_bfe_u32 s41, s2, 0x10002\ns_lshl_b32 s41, s41, 3\ns_lshr_b32 s14, s2, 5\ns_add_u32 s41, s41, s14')
    k('s_mul_i32 s50, s3, 3072')
    k(f's_mul_i32 s51, s41, 86016\ns_add_u32 s51, s51, s50\ns_add_u32 s51, s51, {WQ}')
def roles2(k):
    k('s_and_b32 s42, s2, 7\ns_lshl_b32 s42, s42, 1\ns_bfe_u32 s13, s2, 0x10003\ns_add_u32 s42, s42, s13\ns_lshr_b32 s43, s2, 4')
    k('s_and_b32 s12, s2, 7\ns_lshr_b32 s13, s2, 3'); k.divc(14,15,13,7,16)
    k('s_lshl_b32 s12, s12, 2\ns_add_u32 s12, s12, s14\ns_lshr_b32 s16, s3, 1\ns_and_b32 s17, s3, 1')
    k('s_lshl_b32 s12, s12, 1\ns_add_u32 s44, s12, s16\ns_xor_b32 s45, s44, 1')
    k('s_lshl_b32 s15, s15, 1\ns_add_u32 s46, s15, s17\ns_xor_b32 s47, s46, 1')
    k('s_and_b32 s48, s2, 1\ns_lshl_b32 s48, s48, 3\ns_bfe_u32 s13, s2, 0x30003\ns_add_u32 s48, s48, s13\ns_lshl_b32 s48, s48, 2\ns_add_u32 s48, s48, s3')
    k('s_bfe_u32 s49, s2, 0x20001\ns_lshl_b32 s49, s49, 2\ns_lshr_b32 s14, s2, 6\ns_add_u32 s49, s49, s14')
    k(f's_mul_i32 s52, s49, 200704\ns_add_u32 s52, s52, {WG}\ns_mul_i32 s53, s3, 7168\ns_add_u32 s54, s52, s53\ns_add_u32 s52, s52, s50')
    for d,sr,KS,b in ((55,46,32,WO),(56,47,32,WO),(57,46,112,WD),(58,47,112,WD)):
        k(f's_mul_i32 s{d}, s{sr}, {KS*1024}\ns_mul_i32 s13, s3, {KS*256}\ns_add_u32 s{d}, s{d}, s13\ns_add_u32 s{d}, s{d}, {b}')
def wchunk(k,base,c,i,tag):
    if i==0: k(f's_add_u32 s24, s50, {c*12288}\ns_mov_b32 m0, s24\ns_add_u32 s25, s{base}, {c*12288}')
    k.dma(1,8,'s25',1024*i,tag)
SLOT={3:86016,4:114688,5:0,6:28672}
def wtile(k,t,i):
    if i%4==0: k(f's_add_u32 s24, s53, {SLOT[t]+1024*i}\ns_mov_b32 m0, s24\ns_add_u32 s25, s54, {t*28672+1024*i}')
    k.dma(1,8,'s25',1024*(i&3),f't{t}')
def wreg(k,base,areg,q,j,tag):
    sc=k.sc; k.sc=''
    k(f's_add_u32 s26, s{base+j}, {4096*(q>>2)}'); k.ld4(1000+areg,1,8,'s26',1024*(q&3),tag); k.sc=sc
def wd_reg(q,j): return (112+8*q+4*j) if q<18 else 8*(q-18)+4*j
def xops(k,c):
    def x(i):
        def f():
            if i==0: k(f's_add_u32 s26, s21, {c*4096}')
            k.ld4(X0+16*c+4*i,1,8,'s26',1024*i,f'c{c}')
        return f
    return [x(i) for i in range(4)]
def phase1(k,WB,swapv,chunk,PD,bar,later,tail):
    for c in range(PD):
        for o in chunk(c): o()
    def rd(ks):
        if ks%4==0 and bar: k.wvm(f'c{ks//4}'); k('s_barrier')
        for p in range(3): lds_rd(k,WB+12*(ks%3)+4*p,(ks*3+p)*1024,f'r{ks}')
    rd(0); rd(1); q=[]
    for ks in range(28):
        if ks%4==0:
            assert not q
            c=ks//4; q=list(chunk(c+PD) if c+PD<7 else [])+list(later.get(c,[])); n=len(q); slot=0
            k.wvm(f'c{c}')
        k.wlg(f'r{ks}')
        for p in range(3):
            w=WB+12*(ks%3)+4*p; x=X0+4*ks
            a,b=(x,w) if (swapv and p==2) else (w,x)
            k.mfma(ACC+16*p,a,b,'0' if ks==0 else None)
            if p==0:
                if ks+2<28: rd(ks+2)
                else: tail(ks)
            slot+=1
            while q and (n-len(q))*11<slot*n: q.pop(0)()
def phA(k,l):
    o=l*LOFF
    WB=64; ST=100; CQ=116; CK=132; RS=148; PK=180
    k(f's_mul_i32 s21, s40, 28672\ns_add_u32 s21, s21, {XA+o}\ns_mul_i32 s27, s40, 3584\ns_add_u32 s27, s27, {STA+o}')
    k(f's_mul_i32 s28, s41, 384\ns_add_u32 s28, s28, {CSQ}')
    k('v_lshrrev_b32 v6, 5, v0\nv_lshlrev_b32 v6, 6, v6\nv_and_b32 v7, 31, v0\nv_lshlrev_b32 v7, 2, v7')
    if l==0:
        k.ws_srd()
        def chunk(c):
            x=xops(k,c); w=[(lambda i=i: wchunk(k,51,c,i,f'c{c}')) for i in range(3)]
            return [x[0],w[0],x[1],w[1],x[2],w[2],x[3]]
        PD=3
    else:
        k('s_lshr_b32 s12, s40, 2'); k(flag(4,0,12,13)); k.wait(13,14); chunk=lambda c: xops(k,c); PD=4
    k.ts(1)
    lat=[lambda: k.ld_stats(ST,4,'s27','e')]
    lat+=[(lambda i=i: k.ld4(CQ+4*i,6,8,'s28',16*(i&3)+128*(i>>2),'e')) for i in range(8)]
    lat+=[lambda: k.vmop('buffer_load_dword v8, v7, s[8:11], s28 offen offset:256','e')]
    phase1(k,WB,True,chunk,PD,l==0,{7-PD:lat},lambda ks:None)
    if l==0: roles2(k)
    k.wvm('e')
    k.fin_stats(ST,9,10)
    k('v_mul_f32 v11, v9, v10')
    k(f's_lshl_b32 s29, s3, 8\ns_add_u32 s29, s29, 86016\nv_lshrrev_b32 v12, 5, v0\nv_lshl_add_u32 v13, v12, 7, v7\nv_add_u32 v13, s29, v13')
    k('s_mov_b32 s30, 0\ns_mov_b32 s31, -1\nv_cndmask_b32 v14, v10, v11, s[30:31]\nds_write_b32 v13, v14')
    k('v_lshl_add_u32 v12, v12, 4, s29\ns_waitcnt lgkmcnt(0)')
    for g in range(4):
        k(f'ds_read_b128 v[{RS+4*g}:{RS+4*g+3}], v12 offset:{32*g}')
        k(f'ds_read_b128 v[{RS+16+4*g}:{RS+19+4*g}], v12 offset:{128+32*g}')
    c=f2u(28**-0.5*math.log2(math.e))
    k(f'v_mul_f32 v12, 0x{c:x}, v10')
    k(f's_lshl_b32 s14, s41, 6\ns_add_u32 s14, s14, s40\ns_lshl_b32 s15, s14, 11\ns_add_u32 s15, s15, {QF+o}\ns_lshl_b32 s16, s14, 12\ns_add_u32 s16, s16, {KV+o}')
    k(f's_mov_b32 s34, 0x{ONES:x}\nv_mov_b32 v15, s34\ns_mov_b32 s32, 0x10000000\ns_mov_b32 s33, 0x10000000')
    for i in range(16): k(f'v_fma_f32 v{ACC+16+i}, -v9, v{CK+i}, v{ACC+16+i}')
    for i in range(16): k(f'v_mul_f32 v{ACC+16+i}, v{ACC+16+i}, v10')
    for i in range(8): k(f'v_cvt_pk_bf16_f32 v{PK+8+i}, v{ACC+16+2*i}, v{ACC+17+2*i}')
    k(f'v_cndmask_b32 v{PK+14}, v{PK+14}, v15, s[30:31]')
    k.st4(PK+8,1,8,'s16',0); k.st4(PK+12,1,8,'s16',1024)
    k('s_waitcnt lgkmcnt(0)')
    for i in range(16): k(f'v_mul_f32 v{ACC+32+i}, v{ACC+32+i}, v{RS+i}')
    for i in range(16): k(f'v_fma_f32 v{ACC+32+i}, -v{RS+16+i}, v8, v{ACC+32+i}')
    for i in range(8): k(f'v_cvt_pk_bf16_f32 v{PK+16+i}, v{ACC+32+2*i}, v{ACC+33+2*i}')
    for i in range(8): k(f'v_cndmask_b32 v{PK+16+i}, v{PK+16+i}, v15, s[32:33]')
    k.st4(PK+16,1,8,'s16',2048); k.st4(PK+20,1,8,'s16',3072)
    for i in range(16): k(f'v_fma_f32 v{ACC+i}, -v9, v{CQ+i}, v{ACC+i}')
    for i in range(16): k(f'v_mul_f32 v{ACC+i}, v{ACC+i}, v12')
    for i in range(8): k(f'v_cvt_pk_bf16_f32 v{PK+i}, v{ACC+2*i}, v{ACC+2*i+1}')
    k.st4(PK,1,8,'s15',0); k.st4(PK+4,1,8,'s15',1024)
    k.ts(2)
    k(flag(0,l,41,13)); k.signal(13,tsd=12)
def phCE(k,l,down):
    o=l*LOFF; last=down and l==1
    src,KS,res,dst,std=(HF+o,112,XB+o,XA+o+LOFF,STA+o+LOFF) if down else (OF+o,32,XA+o,XB+o,STB+o)
    per=KS//4; L=f'{k.name}_ce{l}{int(down)}'
    k(f's_cmp_ge_u32 s2, 224\ns_cbranch_scc1 {L}')
    k(f's_mul_i32 s18, s3, {per*1024}')
    for d,sr in ((20,44),(21,45)): k(f's_mul_i32 s{d}, s{sr}, {KS*1024}\ns_add_u32 s{d}, s{d}, s18\ns_add_u32 s{d}, s{d}, {src}')
    k(f's_mul_i32 s24, s44, 28\ns_lshl_b32 s25, s46, 1\ns_add_u32 s24, s24, s25\ns_lshl_b32 s24, s24, 10\ns_add_u32 s25, s24, {res}')
    k('s_lshr_b32 s12, s44, 2'); k(flag(3 if down else 1,l,12,13)); k.wait(13,16)
    k.ts(9 if down else 5)
    R=80; ND=min(per,14); RES=208
    def ld(q):
        if q and q%4==0: k('s_add_u32 s20, s20, 4096\ns_add_u32 s21, s21, 4096')
        for i in range(2): k.ld4(R+8*(q%ND)+4*i,1,8,f's{20+i}',1024*(q&3),f'k{q}')
    for q in range(min(ND,8)): ld(q)
    nxt=min(ND,8)
    for q in range(per):
        k.wvm(f'k{q}')
        b=R+8*(q%ND)
        for s in range(4):
            w=1000+(wd_reg(q,s&1) if down else 112+8*q+4*(s&1))
            k.mfma(ACC+16*s,w,b+4*(s>>1),'0' if q==0 else None)
            if s in (0,2) and nxt<per and nxt<q+ND and (s==0 or q<ND): ld(nxt); nxt+=1
        if q==per-6: k.ld4(RES,1,8,'s25',0,'res'); k.ld4(RES+4,1,8,'s25',1024,'res')
    for s in range(1,4): k(f's_xor_b32 s26, s3, {s}\ns_mul_i32 s26, s26, 12288\ns_add_u32 s26, s26, {(s-1)*4096+HI}\nv_add_u32 v{11+s}, s26, v1')
    k(f's_mul_i32 s26, s3, 12288\ns_add_u32 s26, s26, {HI}\nv_add_u32 v5, s26, v1')
    for s in range(1,4):
        for g in range(4): k.dsw(11+s,ACC+16*s+4*g,1024*g)
    k('v_and_b32 v6, 31, v0\nv_lshrrev_b32 v7, 5, v0')
    k.wvm('res')
    for i in range(8):
        k(f'v_lshlrev_b32 v8, 16, v{RES+i}\nv_and_b32 v9, 0xffff0000, v{RES+i}\nv_add_f32 v{ACC+2*i}, v{ACC+2*i}, v8\nv_add_f32 v{ACC+2*i+1}, v{ACC+2*i+1}, v9')
    k.wlg0(); k('s_barrier')
    for j in range(12): k.dsr(R+4*j,5,1024*j,f'r{j//4}')
    for j in range(3):
        k.wlg(f'r{j}')
        for i in range(16): k(f'v_add_f32 v{ACC+i}, v{ACC+i}, v{R+16*j+i}')
    for i in range(8): k(f'v_cvt_pk_bf16_f32 v{RES+i}, v{ACC+2*i}, v{ACC+2*i+1}')
    if last:
        k.sc=''
        k('v_mul_u32_u24 v6, 896, v6\nv_lshl_add_u32 v6, v7, 4, v6\ns_mul_i32 s25, s44, 28672\ns_lshl_b32 s26, s46, 6\ns_add_u32 s25, s25, s26')
        k.srd(32,6,2048*896)
        k.st4(RES,6,32,'s25',0); k.st4(RES+4,6,32,'s25',32); k.ts(10)
    else:
        k(f's_add_u32 s25, s24, {dst}')
        k.st4(RES,1,8,'s25',0); k.st4(RES+4,1,8,'s25',1024)
        k(f'v_lshlrev_b32 v6, 3, v6\nv_lshl_add_u32 v6, v7, 2, v6\ns_mul_i32 s25, s44, 3584\ns_lshl_b32 s26, s46, 8\ns_add_u32 s25, s25, s26\ns_add_u32 s25, s25, {std}\ns_mov_b32 s27, 0x{ONES:x}')
        k.st_stats(RES,10,27,6,'s25')
        k.ts(10 if down else 6)
        k(flag(4 if down else 2,l,12,13)); k.signal(13,tsd=16 if down else 14)
    k(f'{L}:'); k.vm=[]
    if down and not last:
        for c in range(NA,7):
            for i in range(3): wchunk(k,51,c,i,'pf')
def phD(k,l):
    o=l*LOFF; CSL=143360
    WB=128; ST=164; CSR=180; PK=212
    for i in range(7): wtile(k,4,i)
    k(f's_mul_i32 s30, s49, 896\ns_add_u32 s30, s30, {CSG}\ns_mov_b32 m0, {CSL}\ns_nop 0'); k.dma(1,8,'s30',0,'e')
    k(f's_mul_i32 s21, s48, 28672\ns_add_u32 s21, s21, {XB+o}\ns_mul_i32 s27, s48, 3584\ns_add_u32 s27, s27, {STB+o}')
    k(f's_mul_i32 s28, s48, 112\ns_mul_i32 s29, s49, 7\ns_add_u32 s28, s28, s29\ns_lshl_b32 s28, s28, 10\ns_add_u32 s28, s28, {HF+o}\ns_add_u32 s29, s28, 4096')
    k(f'v_lshrrev_b32 v13, 5, v0\nv_lshlrev_b32 v13, 6, v13\nv_add_u32 v13, {CSL}, v13')
    k('s_lshr_b32 s12, s48, 2'); k(flag(2,l,12,13)); k.wait(13,14); k.ts(7)
    NB=9; RA=4
    def wb(g): return WB+4*((g+3)%NB)
    def rd(g):
        t=3+g//28; q=g%28
        if q==0 and t!=4: k.wvm(f't{t}'); k('s_barrier')
        lds_rd(k,wb(g),SLOT[t]+q*1024,f'g{g}')
    def tail(ks):
        if ks==27:
            for g in range(4): rd(g)
    pf=[(lambda q=q,j=j: wreg(k,57,wd_reg(q,j),q,j,'pf')) for q in range(28) for j in range(2)]
    phase1(k,WB,False,lambda c: xops(k,c),4,False,{3:[lambda: k.ld_stats(ST,4,'s27','e')],4:pf[0:6],5:pf[6:12],6:pf[12:18]},tail)
    k.wvm('e')
    sv=k.L; k.L=[]
    k.fin_stats(ST,10,9)
    c=f2u(-math.log2(math.e))
    k(f'v_sqrt_f32 v12, v{ST+1}\nv_mul_f32 v11, 0x{c:x}, v9')
    Q=[(0,4,x) for x in '\n'.join(k.L).split('\n')]; k.L=sv
    for e in range(7):
        av=1 if e<3 else 28*(e-2)+2
        if e==0: Q+=[(0,)+x for x in cs_ops(CSR,0)]
        g=glu_ops(ACC+16*e,CSR+16*(e&1),PK+4*(e&1),e)
        nx=cs_ops(CSR+16*((e+1)&1),e+1) if e<6 else []
        Q+=[(av,)+x for x in g[:9]+nx+g[9:]]
    bud=0; BUD=int(os.environ.get('BUD','22')); dm=[]
    for g in range(112):
        t=3+g//28; q=g%28
        if q==0: dm=[(lambda i=i,t=t: wtile(k,t+2,i)) for i in range(7)] if t<5 else pf[18+9*(t-5):27+9*(t-5)]
        k.wlg(f'g{g}')
        k.mfma(ACC+16*t,wb(g),X0+4*q,'0' if q==0 else None)
        if g+RA<112: rd(g+RA)
        if dm and q%3==1 or (dm and q==2 and len(dm)>8):
            dm.pop(0)()
            if t<5: continue
        if t==6 and 1<=q<=20: pf[35+q]()
        bud=min(bud+BUD,BUD+4)
        while Q and Q[0][0]<=g and bud>=Q[0][1]:
            x=Q.pop(0); bud-=x[1]; emit_op(k,x[2])
        assert q<27 or not dm
    first=True
    for x in Q:
        if x[0]>111 and first: k.nop(12); first=False
        emit_op(k,x[2])
    k.ts(8)
    k(flag(3,l,12,13)); k.signal(13,tsd=15)
    if l==0:
        for c in range(NA):
            for i in range(3): wchunk(k,51,c,i,'pf')
def gen_F():
    from kb import attn_body
    k=K('main_kernel',256,256,163840,vgpr=256,agpr=256)
    k.prologue()
    k('s_load_dwordx2 s[6:7], s[0:1], 56')
    k('v_add_u32 v2, 65536, v1\nv_add_u32 v3, 65536, v2')
    roles(k)
    for l in range(2):
        k.tson=(l==TSL);
        if l: k.ts(0)
        k.sc=' sc1'
        dw=[(lambda c=c,i=i: wchunk(k,52,c,i,'pf')) for c in range(7) for i in range(3)]
        cw=[(lambda q=q,j=j: wreg(k,55,112+8*q+4*j,q,j,'pf')) for q in range(8) for j in range(2)]
        t3=[(lambda i=i: wtile(k,3,i)) for i in range(7)]
        phA(k,l); attn_body(k,l,flag,[],dw+cw,t3); phCE(k,l,False); phD(k,l); phCE(k,l,True)
    k.tson=True; k.ts(11); k.tsflush()
    k.end(); return k
```

```python
from core import *
def gen_P():
    TCH=int(os.environ.get('TCH','0'))
    k=K('prep_kernel',262 if TCH else 230,256,4*8704+1024,vgpr=128)
    k.prologue(); k.ts(1); k.sc=os.environ.get('PSC',' sc1')
    k('s_load_dwordx4 s[12:15], s[0:1], 0\ns_load_dwordx2 s[16:17], s[0:1], 16\ns_load_dwordx4 s[20:23], s[0:1], 32\ns_load_dwordx2 s[24:25], s[0:1], 48')
    k(f's_mov_b32 s40, 0x{ONES:x}')
    k('v_and_b32 v2, 31, v0\nv_lshrrev_b32 v3, 5, v0\nv_bfe_u32 v4, v0, 2, 2')
    k('v_and_b32 v5, 1, v0\nv_lshlrev_b32 v5, 1, v5\nv_bfe_u32 v6, v0, 1, 1\nv_or_b32 v5, v5, v6')
    k('s_mul_i32 s60, s3, 8704\nv_add_u32 v20, s60, v1')
    k('v_bfe_u32 v21, v0, 4, 1')
    k('s_lshl_b32 s41, s2, 2\ns_add_u32 s41, s41, s3')
    k.divc(42,43,41,14,44)
    k('v_mul_u32_u24 v6, 896, v2\nv_lshl_add_u32 v6, v3, 4, v6')
    k('s_mul_i32 s44, s42, 28672\ns_lshl_b32 s45, s43, 6\ns_add_u32 s44, s44, s45')
    k('s_mul_i32 s61, s42, 28\ns_lshl_b32 s45, s43, 1\ns_add_u32 s61, s61, s45\ns_lshl_b32 s61, s61, 10')
    k(f's_add_u32 s61, s61, {XA}')
    k(f's_mul_i32 s62, s42, 3584\ns_lshl_b32 s46, s43, 8\ns_add_u32 s62, s62, s46\ns_add_u32 s62, s62, {STA}')
    k('v_lshlrev_b32 v7, 3, v2\nv_lshl_add_u32 v7, v3, 2, v7')
    k(f's_cmp_lt_u32 s41, 896\ns_cselect_b32 s63, 0, 0x70000000\ns_add_u32 s61, s61, s63\ns_add_u32 s62, s62, s63')
    k.ws_srd(); k.ts(2)
    if TCH: k('s_cmp_ge_u32 s2, 230\ns_cbranch_scc1 prep_touch')
    k.srd(28,12,2048*896)
    k(f's_lshl_b32 s47, s2, 7\ns_add_u32 s47, s47, {FLG}\nv_mov_b32 v16, 0\nv_lshlrev_b32 v17, 2, v2\nbuffer_store_dword v16, v17, s[8:11], s47 offen')
    sc=k.sc; k.sc=''; k.ld4(8,6,28,'s44',0,'x'); k.ld4(12,6,28,'s44',32,'x')
    k('s_cmp_lt_u32 s2, 112\ns_cbranch_scc1 prep_gu\ns_cmp_lt_u32 s2, 160\ns_cbranch_scc1 prep_qkv\ns_cmp_ge_u32 s2, 216\ns_cbranch_scc1 prep_wo')
    R=24; P=64
    def body(nld,ldf,nks,rdf):
        k.vm=['x','x']
        k.sc=''
        for q in range(nld): ldf(q)
        k.sc=sc
        k.wvm('x'); k.ts(3)
        k.st4(8,1,8,'s61',0); k.st4(12,1,8,'s61',1024)
        k.st_stats(8,16,40,7,'s62')
        for q in range(nld):
            k.wvm(f'w{q}'); k(f'ds_write_b128 v20, v[{R+4*q}:{R+4*q+3}] offset:{rdf(q,None)}')
        k.ts(4); k('s_waitcnt lgkmcnt(0)')
        for q in range(nks):
            for e in range(2): k(f'ds_read_b64_tr_b16 v[{P+4*q+2*e}:{P+4*q+2*e+1}], v22 offset:{rdf(q,e)}')
        k('s_waitcnt lgkmcnt(0)')
    def plain(nks,steps,stride):
        def ldf(q):
            k.ld4(R+4*q,6,32,'s50',0,f'w{q}'); k(f's_add_u32 s50, s50, {steps[q]*stride}')
        body(nks,ldf,nks,lambda q,e: 1024*q+(256*e if e is not None else 0))
    def rdaddr64(fix):
        k('v_lshl_add_u32 v22, v3, 3, v4\nv_lshlrev_b32 v22, 6, v22\nv_lshl_add_u32 v23, v21, 2, v5')
        if fix: k('v_cmp_eq_u32 vcc, 6, v23\nv_cndmask_b32 v23, v23, 7, vcc')
        k('v_lshl_add_u32 v22, v23, 3, v22\nv_add_u32 v22, s60, v22')
    def stores(nks,step):
        for q in range(nks):
            k(f'buffer_store_dwordx4 v[{P+4*q}:{P+4*q+3}], v1, s[8:11], s52 offen'+sc)
            k(f's_add_u32 s52, s52, {step}')
    def colsum():
        CS=4*8704
        k('v_mov_b32 v16, 0\nv_mov_b32 v17, 0')
        for i in range(28): k(f'v_dot2_f32_bf16 v{16+(i&1)}, v{P+i}, s40, v{16+(i&1)}')
        k(f's_lshl_b32 s54, s3, 8\ns_add_u32 s54, s54, {CS}\nv_lshl_add_u32 v18, v0, 2, s54\ns_nop 2\nv_add_f32 v16, v16, v17\nds_write_b32 v18, v16\ns_waitcnt lgkmcnt(0)\ns_barrier')
        k('v_lshlrev_b32 v17, 2, v2')
        for i in range(8): k(f'ds_read_b32 v{R+i}, v17 offset:{CS+128*i}')
        k('v_and_b32 v18, 3, v2\nv_lshrrev_b32 v19, 3, v2\nv_lshl_add_u32 v18, v19, 2, v18\nv_bfe_u32 v19, v2, 2, 1\nv_lshl_add_u32 v18, v19, 4, v18')
        k(f'v_cndmask_b32 v18, v2, v18, s[56:57]\nv_lshlrev_b32 v18, 2, v18')
        k('s_waitcnt lgkmcnt(0)')
        for i in range(1,8): k(f'v_add_f32 v{R}, v{R}, v{R+i}')
        k(f'buffer_store_dword v{R}, v18, s[8:11], s53 offen'+sc)
    k.srd(32,24,1792*896)
    k('s_sub_u32 s41, s2, 160\ns_and_b32 s42, s41, 7\ns_mul_i32 s42, s42, 7\ns_lshr_b32 s41, s41, 3\ns_add_u32 s41, s41, s42')
    k.divc(43,42,41,14,44)
    k('s_mul_i32 s44, s43, 28\ns_mul_i32 s45, s3, 7\ns_add_u32 s44, s44, s45')
    k('s_mul_i32 s50, s44, 14336\ns_lshl_b32 s45, s42, 6\ns_add_u32 s50, s50, s45')
    k('v_lshrrev_b32 v6, 2, v0\nv_mul_u32_u24 v6, 896, v6\nv_and_b32 v23, 3, v0\nv_lshl_add_u32 v6, v23, 4, v6')
    k(f's_mul_i32 s52, s42, 112\ns_add_u32 s52, s52, s44\ns_lshl_b32 s52, s52, 10\ns_add_u32 s52, s52, {WD}')
    rdaddr64(False); plain(7,[16]*7,896); stores(7,1024)
    k.ts(5); k.tsflush(); k('s_endpgm')
    k('prep_wo:'); k.srd(32,16,448*896)
    k('s_sub_u32 s42, s2, 216')
    k('s_mul_i32 s50, s3, 100352\ns_lshl_b32 s45, s42, 6\ns_add_u32 s50, s50, s45')
    k('v_lshrrev_b32 v6, 2, v0\nv_mul_u32_u24 v6, 896, v6\nv_and_b32 v23, 3, v0\nv_lshl_add_u32 v6, v23, 4, v6')
    k(f's_lshl_b32 s52, s42, 5\ns_lshl_b32 s44, s3, 3\ns_add_u32 s52, s52, s44\ns_lshl_b32 s52, s52, 10\ns_add_u32 s52, s52, {WO}')
    rdaddr64(False); plain(8,[16,12]*4,896)
    k('s_mov_b32 s56, -1\ns_mov_b32 s57, 0')
    for q in (1,3,5,7):
        for j in (2,3): k(f'v_cndmask_b32 v{P+4*q+j}, 0, v{P+4*q+j}, s[56:57]')
    stores(8,1024)
    k.ts(5); k.tsflush(); k('s_endpgm')
    k('prep_gu:'); k.srd(32,20,448*3584); k.srd(36,22,448*3584)
    k('s_and_b32 s41, s2, 7\ns_mul_i32 s41, s41, 14\ns_lshr_b32 s42, s2, 3\ns_add_u32 s41, s41, s42'); k.divc(42,43,41,7,44)
    k('s_mul_i32 s50, s3, 401408\ns_lshl_b32 s45, s41, 5\ns_add_u32 s50, s50, s45')
    k('v_lshrrev_b32 v6, 1, v0\nv_mul_u32_u24 v6, 3584, v6\nv_and_b32 v23, 1, v0\nv_lshl_add_u32 v6, v23, 4, v6')
    k(f's_lshl_b32 s53, s41, 7\ns_add_u32 s53, s53, {CSG}\ns_mov_b64 s[56:57], -1')
    k(f's_mul_i32 s52, s42, 200704\ns_add_u32 s52, s52, {WG}')
    k('s_mul_i32 s44, s3, 21\ns_add_u32 s44, s44, s43\ns_movk_i32 s55, 3072')
    k('s_mul_i32 s45, s43, 28\ns_mul_i32 s46, s3, 7\ns_add_u32 s45, s45, s46')
    k('s_cmp_lt_u32 s43, 3\ns_cselect_b32 s44, s44, s45\ns_cselect_b32 s55, s55, 1024\ns_lshl_b32 s44, s44, 10\ns_add_u32 s52, s52, s44')
    k('v_lshl_add_u32 v22, v3, 3, v4\nv_lshlrev_b32 v22, 5, v22\nv_lshl_add_u32 v22, v5, 3, v22\nv_mul_u32_u24 v23, 4224, v21\nv_add3_u32 v22, v22, v23, s60')
    def ldf(q):
        k.ld4(R+4*q,6,32 if q%2==0 else 36,'s50',0,f'w{q}')
        if q%2: k(f's_add_u32 s50, s50, {32*3584}')
    body(8,ldf,7,lambda q,e: (1024*(q//2)+4224*(q&1)) if e is None else 512*q+128*e)
    stores(7,'s55'); colsum()
    k.ts(5); k.tsflush(); k('s_endpgm')
    k('prep_qkv:'); k.srd(32,14,448*2688)
    k('s_sub_u32 s41, s2, 112\ns_and_b32 s42, s41, 7\ns_lshl_b32 s42, s42, 1\ns_bfe_u32 s43, s41, 0x10003\ns_add_u32 s42, s42, s43\ns_lshr_b32 s43, s41, 4')
    k('s_mul_i32 s50, s3, 301056\ns_mul_i32 s45, s43, 896\ns_add_u32 s50, s50, s45\ns_mul_i32 s45, s42, 56\ns_add_u32 s50, s50, s45')
    k('v_lshrrev_b32 v6, 2, v0\nv_mul_u32_u24 v6, 2688, v6\nv_and_b32 v23, 3, v0\nv_lshlrev_b32 v23, 4, v23\nv_min_u32 v23, 40, v23\nv_add_u32 v6, v6, v23')
    k(f's_mul_i32 s53, s42, 3\ns_add_u32 s53, s53, s43\ns_lshl_b32 s53, s53, 7\ns_add_u32 s53, s53, {CSQ}\ns_cmp_lt_u32 s43, 2\ns_cselect_b64 s[56:57], -1, 0')
    k(f's_mul_i32 s52, s42, 84\ns_mul_i32 s44, s3, 21\ns_add_u32 s52, s52, s44\ns_add_u32 s52, s52, s43\ns_lshl_b32 s52, s52, 10\ns_add_u32 s52, s52, {WQ}')
    rdaddr64(True); plain(7,[16]*7,2688)
    k('s_mov_b32 s58, 0x0fffffff\ns_mov_b32 s59, 0x0fffffff')
    for i in range(28): k(f'v_cndmask_b32 v{P+i}, 0, v{P+i}, s[58:59]')
    stores(7,3072); colsum()
    k.ts(5); k.tsflush(); k.end()
    if TCH:
        k('prep_touch:\ns_load_dwordx2 s[6:7], s[0:1], 56\ns_sub_u32 s41, s2, 230\ns_lshr_b32 s41, s41, 3\ns_lshl_b32 s41, s41, 2\ns_add_u32 s41, s41, s3\ns_lshl_b32 s41, s41, 6')
        k('v_add_u32 v18, s41, v0\nv_lshlrev_b32 v18, 16, v18\nbuffer_load_dword v19, v18, s[8:11], 0 offen\ns_waitcnt lgkmcnt(0)')
        k.srd(28,6,2048*896)
        k('buffer_load_dword v20, v18, s[28:31], 0 offen\ns_waitcnt vmcnt(0)\ns_endpgm')
    return k
```

```python
from core import *
import math
from kad import cs_ops, glu_ops, emit_op, lds_rd
X0=1000; ACC=16; HI=114688
TSL=int(os.environ.get('TSL','1'))
NA=int(os.environ.get('NA','0'))
PT6=int(os.environ.get('PT6','0')); MIDB=int(os.environ.get('MIDB','1')); EB=int(os.environ.get('EB','1'))
def flag(kind,l,sgrp,dst): return f's_lshl_b32 s{dst}, s{sgrp}, 7\ns_add_u32 s{dst}, s{dst}, {FLG+((l*5+kind)*16)*128}'
def roles(k):
    k('s_and_b32 s40, s2, 3\ns_lshl_b32 s40, s40, 2\ns_bfe_u32 s13, s2, 0x20003\ns_add_u32 s40, s40, s13\ns_lshl_b32 s40, s40, 2\ns_add_u32 s40, s40, s3')
    k('s_bfe_u32 s41, s2, 0x10002\ns_lshl_b32 s41, s41, 3\ns_lshr_b32 s14, s2, 5\ns_add_u32 s41, s41, s14')
    k('s_mul_i32 s50, s3, 3072')
    k(f's_mul_i32 s51, s41, 86016\ns_add_u32 s51, s51, s50\ns_add_u32 s51, s51, {WQ}')
def roles2(k):
    k('s_and_b32 s42, s2, 7\ns_lshl_b32 s42, s42, 1\ns_bfe_u32 s13, s2, 0x10003\ns_add_u32 s42, s42, s13\ns_lshr_b32 s43, s2, 4')
    k('s_and_b32 s12, s2, 7\ns_lshr_b32 s13, s2, 3'); k.divc(14,15,13,7,16)
    k('s_lshl_b32 s12, s12, 2\ns_add_u32 s12, s12, s14\ns_lshr_b32 s16, s3, 1\ns_and_b32 s17, s3, 1')
    k('s_lshl_b32 s12, s12, 1\ns_add_u32 s44, s12, s16\ns_xor_b32 s45, s44, 1')
    k('s_lshl_b32 s15, s15, 1\ns_add_u32 s46, s15, s17\ns_xor_b32 s47, s46, 1')
    k('s_and_b32 s48, s2, 1\ns_lshl_b32 s48, s48, 3\ns_bfe_u32 s13, s2, 0x30003\ns_add_u32 s48, s48, s13\ns_lshl_b32 s48, s48, 2\ns_add_u32 s48, s48, s3')
    k('s_bfe_u32 s49, s2, 0x20001\ns_lshl_b32 s49, s49, 2\ns_lshr_b32 s14, s2, 6\ns_add_u32 s49, s49, s14')
    k(f's_mul_i32 s52, s49, 200704\ns_add_u32 s52, s52, {WG}\ns_mul_i32 s53, s3, 7168\ns_add_u32 s54, s52, s53\ns_add_u32 s52, s52, s50')
    for d,sr,KS,b in ((55,46,32,WO),(56,47,32,WO),(57,46,112,WD),(58,47,112,WD)):
        k(f's_mul_i32 s{d}, s{sr}, {KS*1024}\ns_mul_i32 s13, s3, {KS*256}\ns_add_u32 s{d}, s{d}, s13\ns_add_u32 s{d}, s{d}, {b}')
def wchunk(k,base,c,i,tag):
    if i==0: k(f's_add_u32 s24, s50, {c*12288}\ns_mov_b32 m0, s24\ns_add_u32 s25, s{base}, {c*12288}')
    k.dma(1,8,'s25',1024*i,tag)
SLOT={3:86016,4:114688,5:0,6:28672}
def wtile(k,t,i):
    if i%4==0: k(f's_add_u32 s24, s53, {SLOT[t]+1024*i}\ns_mov_b32 m0, s24\ns_add_u32 s25, s54, {t*28672+1024*i}')
    k.dma(1,8,'s25',1024*(i&3),f't{t}')
def wreg(k,base,areg,q,j,tag):
    sc=k.sc; k.sc=''
    k(f's_add_u32 s26, s{base+j}, {4096*(q>>2)}'); k.ld4(1000+areg,1,8,'s26',1024*(q&3),tag); k.sc=sc
def wd_reg(q,j): return (112+8*q+4*j) if q<18 else 8*(q-18)+4*j
def xops(k,c):
    def x(i):
        def f():
            if i==0: k(f's_add_u32 s26, s21, {c*4096}')
            k.ld4(X0+16*c+4*i,1,8,'s26',1024*i,f'c{c}')
        return f
    return [x(i) for i in range(4)]
def phase1(k,WB,swapv,chunk,PD,bar,later,tail,tsl=()):
    for c in range(PD):
        for o in chunk(c): o()
    def rd(ks):
        if ks%4==0 and bar: k.wvm(f'c{ks//4}'); k('s_barrier')
        for p in range(3): lds_rd(k,WB+12*(ks%3)+4*p,(ks*3+p)*1024,f'r{ks}')
    rd(0); rd(1); q=[]
    for ks in range(28):
        if ks%4==0:
            assert not q
            c=ks//4; q=list(chunk(c+PD) if c+PD<7 else [])+list(later.get(c,[])); n=len(q); slot=0
            k.wvm(f'c{c}')
            if c in tsl: k.ts(tsl[c])
        k.wlg(f'r{ks}')
        for p in range(3):
            w=WB+12*(ks%3)+4*p; x=X0+4*ks
            a,b=(x,w) if (swapv and p==2) else (w,x)
            k.mfma(ACC+16*p,a,b,'0' if ks==0 else None)
            if p==0:
                if ks+2<28: rd(ks+2)
                else: tail(ks)
            slot+=1
            while q and (n-len(q))*11<slot*n: q.pop(0)()
def phA(k,l):
    o=l*LOFF
    WB=64; ST=100; CQ=116; CK=132; RS=148; PK=180
    k(f's_mul_i32 s21, s40, 28672\ns_add_u32 s21, s21, {XA+o}\ns_mul_i32 s27, s40, 3584\ns_add_u32 s27, s27, {STA+o}')
    k(f's_mul_i32 s28, s41, 384\ns_add_u32 s28, s28, {CSQ}')
    k('v_lshrrev_b32 v6, 5, v0\nv_lshlrev_b32 v6, 6, v6\nv_and_b32 v7, 31, v0\nv_lshlrev_b32 v7, 2, v7')
    if l==0:
        k.ws_srd()
        def chunk(c):
            x=xops(k,c); w=[(lambda i=i: wchunk(k,51,c,i,f'c{c}')) for i in range(3)]
            return [x[0],w[0],x[1],w[1],x[2],w[2],x[3]]
        PD=3
    else:
        k('s_lshr_b32 s12, s40, 2'); k(flag(4,0,12,13)); k.wait(13,14); chunk=lambda c: xops(k,c); PD=4
    k.ts(1)
    lat=[lambda: k.ld_stats(ST,4,'s27','e')]
    lat+=[(lambda i=i: k.ld4(CQ+4*i,6,8,'s28',16*(i&3)+128*(i>>2),'e')) for i in range(8)]
    lat+=[lambda: k.vmop('buffer_load_dword v8, v7, s[8:11], s28 offen offset:256','e')]
    phase1(k,WB,True,chunk,PD,l==0,{7-PD:lat},lambda ks:None,{} if os.environ.get('TSB') else {0:17,6:18})
    if l==0: roles2(k)
    k.wvm('e')
    k.fin_stats(ST,9,10)
    k('v_mul_f32 v11, v9, v10')
    k(f's_lshl_b32 s29, s3, 8\ns_add_u32 s29, s29, 86016\nv_lshrrev_b32 v12, 5, v0\nv_lshl_add_u32 v13, v12, 7, v7\nv_add_u32 v13, s29, v13')
    k('s_mov_b32 s30, 0\ns_mov_b32 s31, -1\nv_cndmask_b32 v14, v10, v11, s[30:31]\nds_write_b32 v13, v14')
    k('v_lshl_add_u32 v12, v12, 4, s29\ns_waitcnt lgkmcnt(0)')
    for g in range(4):
        k(f'ds_read_b128 v[{RS+4*g}:{RS+4*g+3}], v12 offset:{32*g}')
        k(f'ds_read_b128 v[{RS+16+4*g}:{RS+19+4*g}], v12 offset:{128+32*g}')
    c=f2u(28**-0.5*math.log2(math.e))
    k(f'v_mul_f32 v12, 0x{c:x}, v10')
    k(f's_lshl_b32 s14, s41, 6\ns_add_u32 s14, s14, s40\ns_lshl_b32 s15, s14, 11\ns_add_u32 s15, s15, {QF+o}\ns_lshl_b32 s16, s14, 12\ns_add_u32 s16, s16, {KV+o}')
    k(f's_mov_b32 s34, 0x{ONES:x}\nv_mov_b32 v15, s34\ns_mov_b32 s32, 0x10000000\ns_mov_b32 s33, 0x10000000')
    for i in range(16): k(f'v_fma_f32 v{ACC+16+i}, -v9, v{CK+i}, v{ACC+16+i}')
    for i in range(16): k(f'v_mul_f32 v{ACC+16+i}, v{ACC+16+i}, v10')
    for i in range(8): k(f'v_cvt_pk_bf16_f32 v{PK+8+i}, v{ACC+16+2*i}, v{ACC+17+2*i}')
    k(f'v_cndmask_b32 v{PK+14}, v{PK+14}, v15, s[30:31]')
    k.st4(PK+8,1,8,'s16',0); k.st4(PK+12,1,8,'s16',1024)
    k('s_waitcnt lgkmcnt(0)')
    for i in range(16): k(f'v_mul_f32 v{ACC+32+i}, v{ACC+32+i}, v{RS+i}')
    for i in range(16): k(f'v_fma_f32 v{ACC+32+i}, -v{RS+16+i}, v8, v{ACC+32+i}')
    for i in range(8): k(f'v_cvt_pk_bf16_f32 v{PK+16+i}, v{ACC+32+2*i}, v{ACC+33+2*i}')
    for i in range(8): k(f'v_cndmask_b32 v{PK+16+i}, v{PK+16+i}, v15, s[32:33]')
    k.st4(PK+16,1,8,'s16',2048); k.st4(PK+20,1,8,'s16',3072)
    for i in range(16): k(f'v_fma_f32 v{ACC+i}, -v9, v{CQ+i}, v{ACC+i}')
    for i in range(16): k(f'v_mul_f32 v{ACC+i}, v{ACC+i}, v12')
    for i in range(8): k(f'v_cvt_pk_bf16_f32 v{PK+i}, v{ACC+2*i}, v{ACC+2*i+1}')
    k.st4(PK,1,8,'s15',0); k.st4(PK+4,1,8,'s15',1024)
    k.ts(2)
    k(flag(0,l,41,13)); k.signal(13,tsd=12)
def phCE(k,l,down):
    o=l*LOFF; last=down and l==1
    src,KS,res,dst,std=(HF+o,112,XB+o,XA+o+LOFF,STA+o+LOFF) if down else (OF+o,32,XA+o,XB+o,STB+o)
    per=KS//4; L=f'{k.name}_ce{l}{int(down)}'
    k(f's_cmp_ge_u32 s2, 224\ns_cbranch_scc1 {L}')
    k(f's_mul_i32 s18, s3, {per*1024}')
    for d,sr in ((20,44),(21,45)): k(f's_mul_i32 s{d}, s{sr}, {KS*1024}\ns_add_u32 s{d}, s{d}, s18\ns_add_u32 s{d}, s{d}, {src}')
    k(f's_mul_i32 s24, s44, 28\ns_lshl_b32 s25, s46, 1\ns_add_u32 s24, s24, s25\ns_lshl_b32 s24, s24, 10\ns_add_u32 s25, s24, {res}')
    k('s_lshr_b32 s12, s44, 2'); k(flag(3 if down else 1,l,12,13)); k.wait(13,16)
    k.ts(9 if down else 5)
    R=80; ND=min(per,14); RES=208
    def ld(q):
        if q and q%4==0: k('s_add_u32 s20, s20, 4096\ns_add_u32 s21, s21, 4096')
        for i in range(2): k.ld4(R+8*(q%ND)+4*i,1,8,f's{20+i}',1024*(q&3),f'k{q}')
    for q in range(min(ND,8)): ld(q)
    nxt=min(ND,8)
    for q in range(per):
        k.wvm(f'k{q}')
        b=R+8*(q%ND)
        for s in range(4):
            w=1000+(wd_reg(q,s&1) if down else 8*q+4*(s&1))
            k.mfma(ACC+16*s,w,b+4*(s>>1),'0' if q==0 else None)
            if s in (0,2) and nxt<per and nxt<q+ND and (s==0 or q<ND): ld(nxt); nxt+=1
        if q==per-6: k.ld4(RES,1,8,'s25',0,'res'); k.ld4(RES+4,1,8,'s25',1024,'res')
    for s in range(1,4): k(f's_xor_b32 s26, s3, {s}\ns_mul_i32 s26, s26, 12288\ns_add_u32 s26, s26, {(s-1)*4096+HI}\nv_add_u32 v{11+s}, s26, v1')
    k(f's_mul_i32 s26, s3, 12288\ns_add_u32 s26, s26, {HI}\nv_add_u32 v5, s26, v1')
    for s in range(1,4):
        for g in range(4): k.dsw(11+s,ACC+16*s+4*g,1024*g)
    k('v_and_b32 v6, 31, v0\nv_lshrrev_b32 v7, 5, v0')
    k.wvm('res')
    for i in range(8):
        k(f'v_lshlrev_b32 v8, 16, v{RES+i}\nv_and_b32 v9, 0xffff0000, v{RES+i}\nv_add_f32 v{ACC+2*i}, v{ACC+2*i}, v8\nv_add_f32 v{ACC+2*i+1}, v{ACC+2*i+1}, v9')
    k.wlg0(); k('s_barrier')
    for j in range(12): k.dsr(R+4*j,5,1024*j,f'r{j//4}')
    for j in range(3):
        k.wlg(f'r{j}')
        for i in range(16): k(f'v_add_f32 v{ACC+i}, v{ACC+i}, v{R+16*j+i}')
    for i in range(8): k(f'v_cvt_pk_bf16_f32 v{RES+i}, v{ACC+2*i}, v{ACC+2*i+1}')
    if last:
        k.sc=''
        k('v_mul_u32_u24 v6, 896, v6\nv_lshl_add_u32 v6, v7, 4, v6\ns_mul_i32 s25, s44, 28672\ns_lshl_b32 s26, s46, 6\ns_add_u32 s25, s25, s26')
        k.srd(32,6,2048*896)
        k.st4(RES,6,32,'s25',0); k.st4(RES+4,6,32,'s25',32); k.ts(10)
    else:
        k(f's_add_u32 s25, s24, {dst}')
        k.st4(RES,1,8,'s25',0); k.st4(RES+4,1,8,'s25',1024)
        k(f'v_lshlrev_b32 v6, 3, v6\nv_lshl_add_u32 v6, v7, 2, v6\ns_mul_i32 s25, s44, 3584\ns_lshl_b32 s26, s46, 8\ns_add_u32 s25, s25, s26\ns_add_u32 s25, s25, {std}\ns_mov_b32 s27, 0x{ONES:x}')
        k.st_stats(RES,10,27,6,'s25')
        k.ts(10 if down else 6)
        k(flag(4 if down else 2,l,12,13)); k.signal(13,tsd=16 if down else 14)
    k(f'{L}:'); k.vm=[]
    if down and not last:
        for c in range(NA,7):
            for i in range(3): wchunk(k,51,c,i,'pf')
def phD(k,l):
    o=l*LOFF; CSL=143360
    WB=128; ST=164; CSR=180; PK=212
    for i in range(7): wtile(k,4,i)
    k(f's_mul_i32 s30, s49, 896\ns_add_u32 s30, s30, {CSG}\ns_mov_b32 m0, {CSL}\ns_nop 0'); k.dma(1,8,'s30',0,'e')
    k(f's_mul_i32 s21, s48, 28672\ns_add_u32 s21, s21, {XB+o}\ns_mul_i32 s27, s48, 3584\ns_add_u32 s27, s27, {STB+o}')
    k(f's_mul_i32 s28, s48, 112\ns_mul_i32 s29, s49, 7\ns_add_u32 s28, s28, s29\ns_lshl_b32 s28, s28, 10\ns_add_u32 s28, s28, {HF+o}\ns_add_u32 s29, s28, 4096')
    k(f'v_lshrrev_b32 v13, 5, v0\nv_lshlrev_b32 v13, 6, v13\nv_add_u32 v13, {CSL}, v13')
    k('s_lshr_b32 s12, s48, 2'); k(flag(2,l,12,13)); k.wait(13,14); k.ts(7)
    NB=9; RA=4
    def wb(g): return WB+4*((g+3)%NB)
    def rd(g):
        t=3+g//28; q=g%28
        if q==0 and t!=4: k.wvm(f't{t}'); k('s_barrier')
        lds_rd(k,wb(g),SLOT[t]+q*1024,f'g{g}')
    def tail(ks):
        if ks==27:
            for g in range(4): rd(g)
    pf=[(lambda q=q,j=j: wreg(k,57,wd_reg(q,j),q,j,'pf')) for q in range(28) for j in range(2)]
    phase1(k,WB,False,lambda c: xops(k,c),4,False,{3:[lambda: k.ld_stats(ST,4,'s27','e')]} if EB else {3:[lambda: k.ld_stats(ST,4,'s27','e')],4:pf[0:6],5:pf[6:12],6:pf[12:18]},tail,{} if os.environ.get('TSB') else {0:19})
    k.wvm('e')
    sv=k.L; k.L=[]
    k.fin_stats(ST,10,9)
    c=f2u(-math.log2(math.e))
    k(f'v_sqrt_f32 v12, v{ST+1}\nv_mul_f32 v11, 0x{c:x}, v9')
    Q=[(0,4,x) for x in '\n'.join(k.L).split('\n')]; k.L=sv
    for e in range(7):
        av=1 if e<3 else 28*(e-2)+2
        if e==0: Q+=[(0,)+x for x in cs_ops(CSR,0)]
        g=glu_ops(ACC+16*e,CSR+16*(e&1),PK+4*(e&1),e)
        nx=cs_ops(CSR+16*((e+1)&1),e+1) if e<6 else []
        Q+=[(av,)+x for x in g[:9]+nx+g[9:]]
    bud=0; BUD=int(os.environ.get('BUD','22')); dm=[]
    for g in range(112):
        t=3+g//28; q=g%28
        if q==0: dm=[(lambda i=i,t=t: wtile(k,t+2,i)) for i in range(7)] if t<5 else [] if EB else pf[18+9*(t-5):27+9*(t-5)]
        k.wlg(f'g{g}')
        k.mfma(ACC+16*t,wb(g),X0+4*q,'0' if q==0 else None)
        if g+RA<112: rd(g+RA)
        if dm and q%3==1 or (dm and q==2 and len(dm)>8):
            dm.pop(0)()
            if t<5: continue
        if t==6 and 1<=q<=20 and PT6: pf[35+q]()
        bud=min(bud+BUD,BUD+4)
        while Q and Q[0][0]<=g and bud>=Q[0][1]:
            x=Q.pop(0); bud-=x[1]; emit_op(k,x[2])
        assert q<27 or not dm
    first=True
    for x in Q:
        if x[0]>111 and first: k.nop(12); first=False
        emit_op(k,x[2])
    k.ts(8)
    k(flag(3,l,12,13)); k.signal(13,tsd=15)
    if not PT6:
        for f in pf[36:]: f()
    if l==0:
        for c in range(NA):
            for i in range(3): wchunk(k,51,c,i,'pf')
def gen_F():
    from kb import attn_body
    k=K('main_kernel',256,256,163840,vgpr=256,agpr=256)
    k.prologue()
    k('s_load_dwordx2 s[6:7], s[0:1], 56')
    k('v_add_u32 v2, 65536, v1\nv_add_u32 v3, 65536, v2')
    roles(k)
    for l in range(2):
        k.tson=(l==TSL);
        if l: k.ts(0)
        k.sc=' sc1'
        dw=[(lambda c=c,i=i: wchunk(k,52,c,i,'pf')) for c in range(7) for i in range(3)]
        cw=[(lambda q=q,j=j: wreg(k,55,8*q+4*j,q,j,'pf')) for q in range(8) for j in range(2)]
        t3=[(lambda i=i: wtile(k,3,i)) for i in range(7)]
        ew=[(lambda q=q,j=j: wreg(k,57,wd_reg(q,j),q,j,'pf')) for q in range(18) for j in range(2)] if EB else []
        phA(k,l); attn_body(k,l,flag,[] if MIDB else dw+cw+ew,dw+cw+ew if MIDB else [],t3); phCE(k,l,False); phD(k,l); phCE(k,l,True)
    k.tson=True; k.ts(11); k.tsflush()
    k.end(); return k
```

```python
from core import *
def gen_B(name):
    FL=49152
    k=K(name,256,256,FL+64)
    n=name
    k.prologue()
    NT=16
    k('s_and_b32 s12, s2, 7\ns_lshl_b32 s12, s12, 1\ns_bfe_u32 s13, s2, 0x10003\ns_add_u32 s12, s12, s13\ns_lshr_b32 s13, s2, 4')
    k(f's_lshl_b32 s14, s12, 6\ns_lshl_b32 s15, s13, 2\ns_add_u32 s15, s15, s14\ns_lshl_b32 s15, s15, 11\ns_add_u32 s15, s15, {QF}\ns_add_u32 s16, s15, 4096')
    k(f's_lshl_b32 s17, s3, 4\ns_add_u32 s17, s17, s14\ns_lshl_b32 s17, s17, 12\ns_add_u32 s17, s17, {KV}')
    k('s_mov_b32 s19, 0')
    k.ws_srd()
    Q=16; O=48; S=112; P=144; R=152; ND=6
    def kv1(t,i):
        if i==0: k(f's_add_u32 s18, s17, {4096*t}')
        k.ld4(R+16*(t%ND)+4*i,1,8,'s18',1024*i,f'k{t}' if i<2 else f'v{t}')
    def start(real):
        def q(i):
            if real: k.ld4(Q+4*i,1,8,'s15' if i<4 else 's16',1024*(i&3),f'q{i//2}')
            else: k.vmop('buffer_load_dword v3, v1, s[8:11], s15 offen',f'q{i//2}')
        kv1(0,0); q(0); kv1(0,1); q(1); q(2); q(3); kv1(0,2); kv1(0,3)
        for i in range(4,8): q(i)
    start(True)
    k(f's_branch {n}_go')
    k(f'{n}_again:')
    sv=k.vm; k.vm=[]
    start(False)
    k.vm=sv
    k(f'{n}_go:')
    for i in range(4): kv1(1,i)
    pend=[(t,i) for t in range(2,NT) for i in range(4)]
    units=[(t,q) for t in range(NT) for q in range(4)]; NU=len(units)
    def qk(u,h):
        t,q=units[u]
        if h==0 and q==0: k.wvm(f'k{t}')
        if h==0 and t==0: k.wvm(f'q{q}')
        k.mfma(S+16*(u&1),R+16*(t%ND)+4*h,Q+8*q+4*h,'0' if h==0 else None)
    def pv(u,h):
        t,q=units[u]
        if h==0 and q==0: k.wvm(f'v{t}')
        k.mfma(O+16*q,R+16*(t%ND)+8+4*h,P+4*h,'0' if (t==0 and h==0) else None)
    k.ts(1); qk(0,0); k.ts(2); qk(0,1); k.nop(11)
    for u in range(NU):
        s=S+16*(u&1)
        def eg(g):
            for i in range(4): k(f'v_exp_f32 v{s+4*g+i}, v{s+4*g+i}')
            k(f'v_cvt_pk_bf16_f32 v{P+2*g}, v{s+4*g}, v{s+4*g+1}\nv_cvt_pk_bf16_f32 v{P+2*g+1}, v{s+4*g+2}, v{s+4*g+3}')
        def ld():
            if pend and (pend[0][0]<ND or u>4*(pend[0][0]-ND)+4): kv1(*pend.pop(0))
        if u in (4,8,16,32): k.ts(2+[0,4,8,16,32].index(u))
        if u+1<NU: qk(u+1,0)
        eg(0)
        if u>0: pv(u-1,1)
        eg(1)
        if u+1<NU: qk(u+1,1)
        if u<16: ld()
        eg(2)
        pv(u,0)
        ld()
        eg(3)
    assert not pend
    k.nop(2); pv(NU-1,1); k.ts(7)
    for q in range(4):
        k(f's_sub_u32 s20, s3, {q+1}\ns_and_b32 s20, s20, 3\ns_lshl_b32 s20, s20, 12\ns_add_u32 s20, s20, {12288*q}\nv_add_u32 v{4+q}, s20, v1')
    k('s_mul_i32 s20, s3, 12288\nv_add_u32 v2, s20, v1')
    k(f's_lshl_b32 s28, s3, 2\ns_add_u32 s28, s28, {FL}\nv_mov_b32 v9, s28\nv_mov_b32 v10, {FL}\nv_mov_b32 v8, 0x1f800000')
    k(f's_lshl_b32 s25, s13, 2\ns_add_u32 s25, s25, s3\ns_lshl_b32 s25, s25, 5\ns_lshl_b32 s26, s12, 1\ns_add_u32 s25, s25, s26\ns_lshl_b32 s25, s25, 10\ns_add_u32 s25, s25, {OF}')
    A=S
    for q in range(4):
        if q==3: k.nop(4)
        k(f's_cmp_eq_u32 s3, {q}\ns_cbranch_scc1 {n}_own{q}')
        for g in range(4): k(f'ds_write_b128 v{4+q}, v[{O+16*q+4*g}:{O+16*q+4*g+3}] offset:{1024*g}')
        k(f's_branch {n}_nx{q}\n{n}_own{q}:')
        for i in range(16): k(f'v_mov_b32 v{A+i}, v{O+16*q+i}')
        k(f'{n}_nx{q}:')
    k('s_mov_b64 s[30:31], 0')
    for q in range(4):
        k(f'v_cmp_nge_f32 vcc, 0x5d800000, v{O+16*q+12}\nv_cmp_nge_f32 s[28:29], v{O+16*q+12}, v8\ns_or_b32 s31, s31, vcc_hi\ns_or_b32 s31, s31, s29')
    k('s_cmp_lg_u32 s31, 0\ns_cselect_b32 s27, 1, 0\nv_mov_b32 v8, s27\nds_write_b32 v9, v8\ns_waitcnt lgkmcnt(0)\ns_barrier'); k.ts(8)
    k('ds_read_b128 v[4:7], v10')
    for j in range(12): k(f'ds_read_b128 v[{R+4*j}:{R+4*j+3}], v2 offset:{1024*j}')
    k(f's_cmp_lg_u32 s19, 0\ns_cbranch_scc1 {n}_fin')
    k('s_waitcnt lgkmcnt(12)\nv_or3_b32 v8, v4, v5, v6\nv_or_b32 v8, v8, v7\ns_nop 0\nv_readfirstlane_b32 s27, v8')
    k(f's_cmp_lg_u32 s27, 0\ns_cbranch_scc1 {n}_slow')
    k(f'{n}_fin:')
    for j in range(3):
        k(f's_waitcnt lgkmcnt({8-4*j})')
        for i in range(16): k(f'v_add_f32 v{A+i}, v{A+i}, v{R+16*j+i}')
    k(f'v_mov_b32 v8, v{A+12}\nv_mov_b32 v9, v{A+12}\ns_nop 1\nv_permlane32_swap_b32 v8, v9\ns_nop 1\nv_rcp_f32 v9, v9\ns_nop 0')
    for i in range(16): k(f'v_mul_f32 v{A+i}, v{A+i}, v9')
    for i in range(8): k(f'v_cvt_pk_bf16_f32 v{P+i}, v{A+2*i}, v{A+2*i+1}')
    k.st4(P,1,8,'s25',0); k.st4(P+4,1,8,'s25',1024); k.ts(9); k.tsflush()
    k('s_endpgm')
    k(f'{n}_slow:')
    M=8
    k('s_waitcnt lgkmcnt(0)\ns_barrier')
    for q in range(4): k(f'v_mov_b32 v{M+q}, 0xff800000')
    k(f's_mov_b32 s18, s17\ns_mov_b32 s27, {NT}')
    k(f'{n}_mx:')
    k(f'buffer_load_dwordx4 v[{R}:{R+3}], v1, s[8:11], s18 offen\nbuffer_load_dwordx4 v[{R+4}:{R+7}], v1, s[8:11], s18 offen offset:1024\ns_waitcnt vmcnt(0)')
    for q in range(4):
        k.mfma(S,R,Q+8*q,'0'); k.mfma(S,R+4,Q+8*q+4); k.nop(13)
        for i in range(8): k(f'v_max3_f32 v{M+q}, v{M+q}, v{S+2*i}, v{S+2*i+1}')
        k.nop(2)
    k(f's_add_u32 s18, s18, 4096\ns_sub_u32 s27, s27, 1\ns_cmp_lg_u32 s27, 0\ns_cbranch_scc1 {n}_mx')
    k('s_lshl_b32 s20, s3, 10\nv_lshl_add_u32 v12, v0, 2, s20\nv_and_b32 v13, 31, v0\nv_lshlrev_b32 v13, 2, v13')
    for q in range(4): k(f'ds_write_b32 v12, v{M+q} offset:{256*q}')
    k('s_waitcnt lgkmcnt(0)\ns_barrier\ns_mov_b32 s28, 0\ns_mov_b32 s29, -1')
    for q in range(4):
        for w in range(4):
            for h in range(2): k(f'ds_read_b32 v{S+2*w+h}, v13 offset:{1024*w+256*q+128*h}')
        k('s_waitcnt lgkmcnt(0)')
        for i in range(4): k(f'v_max3_f32 v{M+q}, v{M+q}, v{S+2*i}, v{S+2*i+1}')
        k(f'v_sub_f32 v{M+q}, 0, v{M+q}\nv_cvt_pk_bf16_f32 v14, v{M+q}, v{M+q}\nv_lshlrev_b32 v14, 16, v14\nv_sub_f32 v15, v{M+q}, v14')
        k(f'v_cvt_pk_bf16_f32 v14, v14, v15\nv_cndmask_b32 v{Q+8*q+6}, v{Q+8*q+6}, v14, s[28:29]')
    k(f's_barrier\ns_mov_b32 s19, 1\ns_branch {n}_again')
    k.end(); return k

def attn_body(k,l,flag,pre,mid,post):
    o=l*LOFF; HI=114688; FL=113664; n=f'{k.name}_b{l}'; NT=16
    k(f's_lshl_b32 s14, s42, 6\ns_lshl_b32 s15, s43, 2\ns_add_u32 s15, s15, s14\ns_lshl_b32 s15, s15, 11\ns_add_u32 s15, s15, {QF+o}\ns_add_u32 s16, s15, 4096')
    k(f's_lshl_b32 s17, s3, 4\ns_add_u32 s17, s17, s14\ns_lshl_b32 s17, s17, 12\ns_add_u32 s17, s17, {KV+o}')
    k('s_mov_b32 s19, 0')
    for f in pre: f()
    k(flag(0,l,42,13)); k.wait(13,16); k.ts(3)
    Q=16; O=48; S=112; P=144; R=152; ND=6
    def kv1(t,i):
        if i==0: k(f's_add_u32 s18, s17, {4096*t}')
        k.ld4(R+16*(t%ND)+4*i,1,8,'s18',1024*i,f'k{t}' if i<2 else f'v{t}')
    def start(real):
        def q(i):
            if real: k.ld4(Q+4*i,1,8,'s15' if i<4 else 's16',1024*(i&3),f'q{i//2}')
            else: k.vmop('buffer_load_dword v13, v1, s[8:11], s15 offen sc1',f'q{i//2}')
        kv1(0,0); q(0); kv1(0,1); q(1); q(2); q(3); kv1(0,2); kv1(0,3)
        for i in range(4,8): q(i)
    start(True)
    k(f'{n}_go:')
    for i in range(4): kv1(1,i)
    pend=[(t,i) for t in range(2,NT) for i in range(4)]
    units=[(t,q) for t in range(NT) for q in range(4)]; NU=len(units)
    def qk(u,h):
        t,q=units[u]
        if h==0 and q==0: k.wvm(f'k{t}')
        if h==0 and t==0: k.wvm(f'q{q}')
        k.mfma(S+16*(u&1),R+16*(t%ND)+4*h,Q+8*q+4*h,'0' if h==0 else None)
    def pv(u,h):
        t,q=units[u]
        if h==0 and q==0: k.wvm(f'v{t}')
        k.mfma(O+16*q,R+16*(t%ND)+8+4*h,P+4*h,'0' if (t==0 and h==0) else None)
    qk(0,0); qk(0,1); k.nop(11)
    mid=list(mid)
    for u in range(NU):
        s=S+16*(u&1)
        def eg(g):
            for i in range(4): k(f'v_exp_f32 v{s+4*g+i}, v{s+4*g+i}')
            k(f'v_cvt_pk_bf16_f32 v{P+2*g}, v{s+4*g}, v{s+4*g+1}\nv_cvt_pk_bf16_f32 v{P+2*g+1}, v{s+4*g+2}, v{s+4*g+3}')
        def ld():
            if pend and (pend[0][0]<ND or u>4*(pend[0][0]-ND)+4): kv1(*pend.pop(0))
        if u+1<NU: qk(u+1,0)
        eg(0)
        if u>0: pv(u-1,1)
        if u>=16 and len(mid)>NU-u: mid.pop(0)()
        if os.environ.get('TSB') and u in (0,16,40): k.ts({0:19,16:17,40:18}[u])
        eg(1)
        if u+1<NU: qk(u+1,1)
        if u<16: ld()
        elif mid: mid.pop(0)()
        eg(2)
        pv(u,0)
        n0=len(k.vm); ld()
        if u>=16 and len(k.vm)==n0 and mid: mid.pop(0)()
        eg(3)
    assert not pend and not mid
    k.nop(2); pv(NU-1,1)
    for q in range(4):
        k(f's_sub_u32 s20, s3, {q+1}\ns_and_b32 s20, s20, 3\ns_lshl_b32 s20, s20, 12\ns_add_u32 s20, s20, {12288*q+HI}\nv_add_u32 v{4+q}, s20, v1')
    k(f's_mul_i32 s20, s3, 12288\ns_add_u32 s20, s20, {HI}\nv_add_u32 v12, s20, v1')
    k(f's_lshl_b32 s28, s3, 2\ns_add_u32 s28, s28, {FL}\nv_mov_b32 v9, s28\nv_mov_b32 v10, {FL}\nv_mov_b32 v8, 0x1f800000')
    k(f's_lshl_b32 s25, s43, 2\ns_add_u32 s25, s25, s3\ns_lshl_b32 s25, s25, 5\ns_lshl_b32 s26, s42, 1\ns_add_u32 s25, s25, s26\ns_lshl_b32 s25, s25, 10\ns_add_u32 s25, s25, {OF+o}')
    A=S
    for q in range(4):
        if q==3: k.nop(4)
        k(f's_cmp_eq_u32 s3, {q}\ns_cbranch_scc1 {n}_own{q}')
        for g in range(4): k(f'ds_write_b128 v{4+q}, v[{O+16*q+4*g}:{O+16*q+4*g+3}] offset:{1024*g}')
        k(f's_branch {n}_nx{q}\n{n}_own{q}:')
        for i in range(16): k(f'v_mov_b32 v{A+i}, v{O+16*q+i}')
        k(f'{n}_nx{q}:')
    k('s_mov_b64 s[30:31], 0')
    for q in range(4):
        k(f'v_cmp_nge_f32 vcc, 0x5d800000, v{O+16*q+12}\nv_cmp_nge_f32 s[28:29], v{O+16*q+12}, v8\ns_or_b32 s31, s31, vcc_hi\ns_or_b32 s31, s31, s29')
    k('s_cmp_lg_u32 s31, 0\ns_cselect_b32 s27, 1, 0\nv_mov_b32 v8, s27\nds_write_b32 v9, v8\ns_waitcnt lgkmcnt(0)\ns_barrier')
    k('ds_read_b128 v[4:7], v10')
    for j in range(12): k(f'ds_read_b128 v[{R+4*j}:{R+4*j+3}], v12 offset:{1024*j}')
    k(f's_cmp_lg_u32 s19, 0\ns_cbranch_scc1 {n}_fin')
    k('s_waitcnt lgkmcnt(12)\nv_or3_b32 v8, v4, v5, v6\nv_or_b32 v8, v8, v7\ns_nop 0\nv_readfirstlane_b32 s27, v8')
    k(f's_cmp_lg_u32 s27, 0\ns_cbranch_scc1 {n}_slow')
    k(f'{n}_fin:')
    for j in range(3):
        k(f's_waitcnt lgkmcnt({8-4*j})')
        for i in range(16): k(f'v_add_f32 v{A+i}, v{A+i}, v{R+16*j+i}')
    k(f'v_mov_b32 v8, v{A+12}\nv_mov_b32 v9, v{A+12}\ns_nop 1\nv_permlane32_swap_b32 v8, v9\ns_nop 1\nv_rcp_f32 v9, v9\ns_nop 0')
    for i in range(16): k(f'v_mul_f32 v{A+i}, v{A+i}, v9')
    for i in range(8): k(f'v_cvt_pk_bf16_f32 v{P+i}, v{A+2*i}, v{A+2*i+1}')
    k.st4(P,1,8,'s25',0); k.st4(P+4,1,8,'s25',1024); k.ts(4)
    k(flag(1,l,43,13)); k.signal(13,tsd=13)
    for f in post: f()
    sv=(k.L,k.vm); k.L=[]; k.vm=[]
    k(f'{n}_slow:')
    M=8
    k('s_waitcnt vmcnt(0) lgkmcnt(0)\ns_barrier')
    for q in range(4): k(f'v_mov_b32 v{M+q}, 0xff800000')
    k(f's_mov_b32 s18, s17\ns_mov_b32 s27, {NT}')
    k(f'{n}_mx:')
    k(f'buffer_load_dwordx4 v[{R}:{R+3}], v1, s[8:11], s18 offen sc1\nbuffer_load_dwordx4 v[{R+4}:{R+7}], v1, s[8:11], s18 offen offset:1024 sc1\ns_waitcnt vmcnt(0)')
    for q in range(4):
        k.mfma(S,R,Q+8*q,'0'); k.mfma(S,R+4,Q+8*q+4); k.nop(13)
        for i in range(8): k(f'v_max3_f32 v{M+q}, v{M+q}, v{S+2*i}, v{S+2*i+1}')
        k.nop(2)
    k(f's_add_u32 s18, s18, 4096\ns_sub_u32 s27, s27, 1\ns_cmp_lg_u32 s27, 0\ns_cbranch_scc1 {n}_mx')
    k(f's_lshl_b32 s20, s3, 10\ns_add_u32 s20, s20, {HI}\nv_lshl_add_u32 v12, v0, 2, s20\nv_and_b32 v13, 31, v0\nv_lshlrev_b32 v13, 2, v13\nv_add_u32 v13, {HI}, v13')
    for q in range(4): k(f'ds_write_b32 v12, v{M+q} offset:{256*q}')
    k('s_waitcnt lgkmcnt(0)\ns_barrier\ns_mov_b32 s28, 0\ns_mov_b32 s29, -1')
    for q in range(4):
        for w in range(4):
            for h in range(2): k(f'ds_read_b32 v{S+2*w+h}, v13 offset:{1024*w+256*q+128*h}')
        k('s_waitcnt lgkmcnt(0)')
        for i in range(4): k(f'v_max3_f32 v{M+q}, v{M+q}, v{S+2*i}, v{S+2*i+1}')
        k(f'v_sub_f32 v{M+q}, 0, v{M+q}\nv_cvt_pk_bf16_f32 v14, v{M+q}, v{M+q}\nv_lshlrev_b32 v14, 16, v14\nv_sub_f32 v15, v{M+q}, v14')
        k(f'v_cvt_pk_bf16_f32 v14, v14, v15\nv_cndmask_b32 v{Q+8*q+6}, v{Q+8*q+6}, v14, s[28:29]')
    k(f's_barrier\ns_mov_b32 s19, 1')
    start(False)
    k(f's_branch {n}_go')
    k.tail=getattr(k,'tail',[])+k.L; k.L,k.vm=sv
```
